```python
import torch

def _softmax(x, axis=-1):
    return torch.softmax(x, dim=axis)
def _gelu(x):
    return torch.nn.functional.gelu(x, approximate="tanh")
def _silu(x):
    return torch.nn.functional.silu(x)
def _sigmoid(x):
    return torch.sigmoid(x)
def _layernorm(x, axis=-1, eps=1e-5):
    m = x.mean(dim=axis, keepdim=True)
    v = x.var(dim=axis, keepdim=True, unbiased=False)
    return (x - m) / torch.sqrt(v + eps)
def _scatter_add(tgt, idx, src, axis=0):
    return tgt.clone().index_add_(axis, idx, src)
def _segment_sum(src, seg, n):
    out = torch.zeros((n,) + src.shape[1:], dtype=src.dtype)
    return out.index_add_(0, seg, src)
def _pad(x, pw):
    flat = tuple(v for pair in reversed(pw) for v in pair)
    return torch.nn.functional.pad(x, flat)

kernel_name = 'parallel_sum__sliding_local_dilated__moe_arch_mod__prompt'

def setup_inputs():

    _w = (lambda a: (lambda t: t.to(torch.bfloat16) if t.is_floating_point() else t)(torch.as_tensor(a)))
    def _A_setup():
        B, S, D = 1, 2048, 640
        return {
            "x": _w((lambda *s: torch.randn(*s, dtype=torch.bfloat16) * 0.05)(B, S, D)),
            "wqkv": _w((lambda *s: torch.randn(*s, dtype=torch.bfloat16) * 0.05)(D, 3 * D)),
            "wo": _w((lambda *s: torch.randn(*s, dtype=torch.bfloat16) * 0.05)(D, D)),
        }
    _A_in = _A_setup()

    def _B_setup():
        B, S, D, F, C = 1, 2048, 640, 1728, 2
        return {
            "x": _w((lambda *s: torch.randn(*s, dtype=torch.bfloat16) * 0.05)(B, S, D)),
            "w_r": _w((lambda *s: torch.randn(*s, dtype=torch.bfloat16) * 0.05)(D)),
            "w_gate": _w((lambda *s: torch.randn(*s, dtype=torch.bfloat16) * 0.05)(D, F)),
            "w_up": _w((lambda *s: torch.randn(*s, dtype=torch.bfloat16) * 0.05)(D, F)),
            "w_down": _w((lambda *s: torch.randn(*s, dtype=torch.bfloat16) * 0.05)(F, D)),
        }
    _B_in = _B_setup()

    return {
        "A_x": _A_in["x"],
        "A_wqkv": _A_in["wqkv"],
        "A_wo": _A_in["wo"],
        "B_x": _B_in["x"],
        "B_w_r": _B_in["w_r"],
        "B_w_gate": _B_in["w_gate"],
        "B_w_up": _B_in["w_up"],
        "B_w_down": _B_in["w_down"],
    }

def reference(A_x, A_wqkv, A_wo, B_x, B_w_r, B_w_gate, B_w_up, B_w_down):
    def _A_ref(x, wqkv, wo):
        B, S, D = x.shape
        H = 32; Dh = D // H
        W, dil = 8, 2
        qkv = (lambda x, *d: x.permute(*d))((x @ wqkv).reshape(B, S, 3, H, Dh), 2, 0, 3, 1, 4)
        q, k, v = qkv[0], qkv[1], qkv[2]
        scale = Dh ** -0.5
        pos = torch.arange(S)
        off = torch.arange(W) * dil
        idx = pos[:, None] - off[None, :]
        mask = idx >= 0
        idx_c = torch.where(mask, idx, 0).reshape(-1)
        kg = k[:, :, idx_c, :].reshape(B, H, S, W, Dh)
        vg = v[:, :, idx_c, :].reshape(B, H, S, W, Dh)
        logits = torch.einsum("bhsd,bhswd->bhsw", q, kg) * scale
        logits = torch.where(mask[None, None, :, :], logits, -1e9)
        attn = _softmax(logits, axis=-1)
        o = torch.einsum("bhsw,bhswd->bhsd", attn, vg)
        return (lambda x, *d: x.permute(*d))(o, 0, 2, 1, 3).reshape(B, S, D) @ wo

    def _B_ref(x, w_r, w_gate, w_up, w_down):
        B, S, D = x.shape
        C = 2
        r = x @ w_r
        idx = torch.argsort(-r, axis=-1)[:, :C]
        idx_e = (lambda x, n, axis: torch.repeat_interleave(x, n, dim=axis))(idx.reshape(B, C, 1), D, axis=2)
        x_sel = (lambda x, i, axis: torch.take_along_dim(x, i, dim=axis))(x, idx_e, axis=1)
        g = _silu(x_sel @ w_gate)
        u = x_sel @ w_up
        y = (g * u) @ w_down
        r_sel = _sigmoid((lambda x, i, axis: torch.take_along_dim(x, i, dim=axis))(r, idx, axis=1))
        y = y * r_sel.reshape(B, C, 1)
        b_off = (torch.arange(B) * S).reshape(B, 1)
        flat_idx = (idx + b_off).reshape(B * C)
        zero = (x * 0.0).reshape(B * S, D)
        upd = _scatter_add(zero, flat_idx, y.reshape(B * C, D), axis=0)
        return x + upd.reshape(B, S, D)

    x = A_x
    xn = _layernorm(x, axis=-1)
    return x + _A_ref(xn, A_wqkv, A_wo) + _B_ref(xn, B_w_r, B_w_gate, B_w_up, B_w_down)
```

```python
import re

TRANS = ("v_exp_f32", "v_log_f32", "v_rcp_f32", "v_rsq_f32", "v_sqrt_f32", "v_sin_f32", "v_cos_f32")

def regs(tok):
    tok = tok.strip()
    tok = re.sub(r"^-|^abs\(|\)$|^\||\|$", "", tok)
    m = re.fullmatch(r"([vsa])(\d+)", tok)
    if m: return {(m.group(1), int(m.group(2)))}
    m = re.fullmatch(r"([vsa])\[(\d+):(\d+)\]", tok)
    if m: return {(m.group(1), i) for i in range(int(m.group(2)), int(m.group(3)) + 1)}
    if tok == "vcc": return {("s", "vcc")}
    if tok in ("vcc_lo", "vcc_hi"): return {("s", "vcc")}
    if tok == "m0": return {("s", "m0")}
    if tok in ("exec", "exec_lo", "exec_hi"): return {("s", "exec")}
    return set()

class Ins:
    def __init__(self, line):
        self.line = line
        s = line.split(";")[0].strip()
        self.is_ins = bool(s) and not s.endswith(":") and not s.startswith(".")
        self.op = ""; self.w = set(); self.r = set(); self.cls = "other"; self.states = 0
        self.srcC = set(); self.srcAB = set(); self.dpp = False; self.stdata = set()
        if not self.is_ins: return
        p = s.split(None, 1)
        self.op = p[0]
        rest = p[1] if len(p) > 1 else ""
        ops = [x.strip() for x in re.split(r",(?![^\[]*\])", rest)]
        if ops:
            last = ops[-1].split()
            mods = last[1:] if last else []
            if last: ops[-1] = last[0]
        else:
            mods = []
        self.mods = mods
        op = self.op
        self.states = 1
        if op == "s_nop": self.states = int(ops[0], 0) + 1
        R = [regs(o) for o in ops]
        U = lambda l: set().union(*l) if l else set()
        if op.startswith("v_mfma"):
            self.cls = "mfma"; self.w = R[0]; self.srcAB = R[1] | R[2]; self.srcC = R[3]; self.r = self.srcAB | self.srcC
        elif op.startswith("v_"):
            self.cls = "valu"
            self.dpp = "_dpp" in op or any(m.startswith("row_") or m.startswith("quad_perm") for m in mods)
            if op.startswith("v_permlane"):
                self.w = R[0] | R[1]; self.r = R[0] | R[1]
            elif op.startswith("v_cmp"):
                self.w = R[0]; self.r = U(R[1:])
            elif op.startswith(("v_add_co", "v_sub_co", "v_addc_co", "v_subb_co")):
                self.w = R[0] | R[1]; self.r = U(R[2:])
            else:
                self.w = R[0]; self.r = U(R[1:])
                if op.startswith(("v_fmac", "v_dot2c", "v_writelane")) or self.dpp: self.r |= R[0]
        elif op.startswith("ds_"):
            self.cls = "ds"
            if op.startswith(("ds_read", "ds_bpermute", "ds_permute", "ds_swizzle")):
                self.w = R[0]; self.r = U(R[1:])
            else:
                self.r = U(R)
        elif op.startswith(("buffer_", "global_")):
            self.cls = "vmem"
            lds = "lds" in mods
            if lds:
                self.r = U(R) | {("s", "m0")}; self.ldsdma = True
            elif "_load" in op:
                self.w = R[0]; self.r = U(R[1:])
            elif "_atomic" in op:
                self.r = U(R)
                if "sc0" in mods: self.w = R[0]
            else:
                self.r = U(R)
                if op.endswith(("x3", "x4")):
                    self.stdata = R[0] if op.startswith("buffer_") else R[1]
        elif op.startswith(("s_load", "s_buffer_load", "s_memtime", "s_memrealtime")):
            self.cls = "smem"; self.w = R[0]; self.r = U(R[1:])
        elif op.startswith("s_"):
            self.cls = "salu"
            if op.startswith(("s_cmp", "s_bitcmp", "s_cbranch", "s_branch", "s_waitcnt", "s_barrier", "s_nop", "s_endpgm", "s_setprio", "s_sleep")):
                self.r = U(R)
            else:
                self.w = R[0] if R else set(); self.r = U(R[1:])
                if "saveexec" in op: self.w |= {("s", "exec")}

def need(p, c):
    n = 0
    pv = {x for x in p.w if x[0] in "va"}; ps = {x for x in p.w if x[0] == "s"}
    if p.cls == "valu":
        isdot = p.op.startswith("v_dot")
        if c.cls == "mfma" and pv & c.r: n = max(n, 3 if isdot else 2)
        if c.cls == "valu":
            if c.dpp and pv & c.r: n = max(n, 2)
            if c.op.startswith("v_permlane") and pv & c.r: n = max(n, 2)
            if c.op.startswith(("v_readlane", "v_readfirstlane")) and pv & c.r: n = max(n, 1)
            if p.op in TRANS or p.op.replace("_e32", "").replace("_e64", "") in TRANS:
                if pv & c.r: n = max(n, 1)
            if ps & c.r: n = max(n, 4 if c.op.startswith(("v_readlane", "v_writelane")) else 2)
            if isdot and pv & (c.r | c.w):
                same_acc = c.op == p.op and c.op.startswith("v_dot2c") and (pv & c.w)
                if not same_acc: n = max(n, 3)
        if isdot and c.cls in ("ds", "vmem") and pv & c.r: n = max(n, 3)
        if c.cls == "vmem" and ps & c.r: n = max(n, 5)
        if c.cls in ("salu", "smem") and ps & c.r: n = max(n, 1)
    if p.cls == "mfma":
        big = "32x32" in p.op
        if c.cls == "mfma":
            if p.w & c.srcAB: n = max(n, 12 if big else 8)
            if p.w & c.srcC and not (p.w == c.srcC and p.op == c.op): n = max(n, 10 if big else 6)
            if p.w & c.w and not (p.w == c.srcC): n = max(n, 10 if big else 6)
        elif c.cls in ("valu", "ds", "vmem"):
            if p.w & (c.r | c.w): n = max(n, 12 if big else 8)
            if c.cls == "valu" and p.srcC & c.w: n = max(n, 7 if big else 3)
    if p.cls == "salu" and ("s", "m0") in p.w and c.cls == "vmem" and ("s", "m0") in c.r: n = max(n, 1)
    if p.cls == "vmem" and p.stdata and (p.stdata & c.w): n = max(n, 2)
    return n

def pad(lines):
    out = []; hist = []
    for line in lines:
        ins = Ins(line)
        if ins.is_ins:
            dist = 0; req = 0
            for p in reversed(hist):
                k = need(p, ins) - dist
                if k > req: req = k
                dist += p.states
                if dist >= 20: break
            while req > 0:
                k = min(req, 16)
                nop = Ins(f"s_nop {k-1}")
                out.append("    " + nop.line + "   ; hz"); hist.append(nop); req -= k
            hist.append(ins)
            if len(hist) > 40: hist = hist[-30:]
            out.append("    " + line)
        else:
            out.append(line)
    return out
```

```python
import sys
from hz import pad

NAME = "parallel_sum__sliding_local_dilated__moe_arch_mod__prompt"

HDR = """; Kernarg layout for this problem (88 bytes, ptrs only, base s[0:1]):
; @launch grid=(256,1,1) block=(512,1,1) lds=163840
"""

SLOT = 38912
XOFF = 24576
QD, KD, VD = 0, 14336, 28672
OSCR = 43008
XRES = SLOT + XOFF
WO = 2 * SLOT
MISC = 159744
NEGM, RSTD, INFO, YBUF = MISC, MISC + 512, MISC + 1024, MISC + 1280
SX_OFF, OX_OFF, FL_OFF, YP_OFF = 0, 0x180000, 0x480000, 0x4C0000
WS_BYTES = YP_OFF + 27 * 5120
STAMP_OFF = 0x800000
OOB = 0x7FFF0000
DBG_GRP, DBG_FFN = 128, 212
SPIN = 40000
BIG = 0xF149F2CA


def lanemask(fn):
    m = 0
    for l in range(64):
        if fn(l): m |= 1 << l
    return m & 0xFFFFFFFF, m >> 32


class G:
    def __init__(self, FX=7, stamp=False, force_remote=False, cx=11):
        self.l = []
        self.FX = FX; self.stamp = stamp; self.force_remote = force_remote; self.cx = cx
        self.nst = 0

    def e(self, s):
        for x in s.strip().split("\n"):
            self.l.append(x.strip())

    def srd(self, d, b, nbytes, shift=0):
        e = self.e
        if shift:
            e(f"s_sub_u32 s{d}, s{b}, {shift}")
            e(f"s_subb_u32 s{d+1}, s{b+1}, 0")
        else:
            e(f"s_mov_b32 s{d}, s{b}")
            e(f"s_mov_b32 s{d+1}, s{b+1}")
        e(f"s_mov_b32 s{d+2}, {nbytes + shift}")
        e(f"s_mov_b32 s{d+3}, 0x00020000")

    def st(self, i):
        if self.stamp:
            self.e(f"s_memrealtime s[{82+2*i}:{83+2*i}]")

    def smask(self, d, fn):
        lo, hi = lanemask(fn)
        self.e(f"s_mov_b32 s{d}, {lo:#x}")
        self.e(f"s_mov_b32 s{d+1}, {hi:#x}")

    def rbf(self, d, s):
        self.e(f"v_cvt_pk_bf16_f32 v{d}, v{s}, v{s}")
        self.e(f"v_and_b32 v{d}, 0xffff0000, v{d}")

    def ln_scalars(self, s1, s2, mean, sd, t):
        e = self.e
        e(f"v_mul_f32 v{s1}, 0x3acccccd, v{s1}")
        e(f"v_mul_f32 v{s2}, 0x3acccccd, v{s2}")
        e(f"v_fma_f32 v{t}, -v{s1}, v{s1}, v{s2}")
        e(f"v_max_f32 v{t}, 0, v{t}")
        self.rbf(t, t)
        e(f"v_add_f32 v{t}, 0x3727c5ac, v{t}")
        self.rbf(t, t)
        e(f"v_sqrt_f32 v{t}, v{t}")
        self.rbf(mean, s1)
        self.rbf(sd, t)

    def row_red(self, op, v):
        for k in (8, 4, 2, 1):
            self.e(f"{op}_dpp v{v}, v{v}, v{v} row_ror:{k} row_mask:0xf bank_mask:0xf")

    def wave_umax(self, v, t, sd, st):
        e = self.e
        e(f"v_mov_b32 v{t}, v{v}")
        self.row_red("v_max_u32", t)
        e(f"v_readlane_b32 s{sd}, v{t}, 0")
        e(f"v_readlane_b32 s{st}, v{t}, 16")
        e(f"v_readlane_b32 s{st+1}, v{t}, 32")
        e(f"v_readlane_b32 s{st+2}, v{t}, 48")
        e(f"s_max_u32 s{sd}, s{sd}, s{st}")
        e(f"s_max_u32 s{st+1}, s{st+1}, s{st+2}")
        e(f"s_max_u32 s{sd}, s{sd}, s{st+1}")

    def top2(self, v, t, k1, k2, st):
        e = self.e
        self.wave_umax(v, t, k1, st)
        e(f"v_cmp_ne_u32 vcc, s{k1}, v{v}")
        e(f"v_cndmask_b32 v{v}, 0, v{v}, vcc")
        self.wave_umax(v, t, k2, st)

    def poll_keys(self, tag, vk, va, t, k1, k2, st):
        e = self.e
        e(f"v_lshlrev_b32 v{va}, 2, v0")
        e(f"v_cmp_gt_u32 vcc, 28, v0")
        e(f"v_mov_b32 v{t}, {OOB}")
        e(f"v_cndmask_b32 v{va}, v{t}, v{va}, vcc")
        e(f"s_mov_b32 s{st}, 0")
        e(f"L_pk_{tag}:")
        e(f"buffer_load_dword v{vk}, v{va}, s[52:55], 0 offen sc1")
        e(f"s_add_u32 s{st}, s{st}, 1")
        e("s_waitcnt vmcnt(0)")
        e(f"v_cmp_ne_u32 vcc, 0, v{vk}")
        e(f"s_cmp_ge_u32 s{st}, {SPIN}")
        e(f"s_cbranch_scc1 L_pkd_{tag}")
        e("s_cmp_eq_u32 vcc_lo, 0x0fffffff")
        e(f"s_cbranch_scc0 L_pk_{tag}")
        e(f"L_pkd_{tag}:")
        self.top2(vk, t, k1, k2, st)

    def loader_stage(self):
        e = self.e
        e("s_lshl_b32 s58, s31, 7")
        e("s_add_u32 s58, s58, s57")
        e(f"s_add_u32 m0, s56, {XOFF}")
        e("s_mov_b64 exec, s[60:61]")
        e("buffer_load_dwordx4 v10, s[32:35], s58 offen lds")
        e("s_mov_b64 exec, -1")
        for n in range(1, 7):
            e("s_add_u32 m0, m0, 2048")
            e(f"s_add_u32 s58, s58, {16*1280}")
            e("buffer_load_dwordx4 v10, s[32:35], s58 offen lds")
        e("s_mov_b32 m0, s56")
        e(f"s_mul_i32 s59, s31, {64*3840}")
        for n in range(4):
            for a in range(3):
                off = f" offset:{a*1280}" if a else ""
                e(f"buffer_load_dwordx4 v11, s[36:39], s59 offen{off} lds")
                if a < 2:
                    e(f"s_add_u32 m0, m0, {8192-1280}")
                elif n < 3:
                    e(f"s_sub_u32 m0, m0, {2*(8192-1280) - 2048}")
                    e(f"s_add_u32 s59, s59, {16*3840}")
        e("s_add_u32 s31, s31, 1")
        e("s_cmp_eq_u32 s31, 10")
        e("s_cselect_b32 s31, 0, s31")
        e(f"s_add_u32 s56, s56, {SLOT}")
        e(f"s_cmp_ge_u32 s56, {4*SLOT}")
        e(f"s_cselect_b32 s58, {4*SLOT}, 0")
        e("s_sub_u32 s56, s56, s58")

    def wo_loads(self, n):
        e = self.e
        for _ in range(n):
            e("buffer_load_dwordx4 v12, s[40:43], s59 offen lds")
            e("s_add_u32 m0, m0, 2048")
            e(f"s_add_u32 s59, s59, {16*1280}")
            e(f"s_cmp_eq_u32 s59, {640*1280}")
            e("s_cselect_b32 s59, 0, s59")

    def xstore(self, tag, text):
        e = self.e
        e("s_cmp_eq_u32 s78, 1")
        e(f"s_cbranch_scc0 L_xr_{tag}")
        for t in text: e(t)
        e(f"s_branch L_xd_{tag}")
        e(f"L_xr_{tag}:")
        for t in text: e(t + " sc1")
        e(f"L_xd_{tag}:")

    def gen(self):
        e = self.e
        kn = NAME + "_kernel"
        e(f"""
        .amdgcn_target "amdgcn-amd-amdhsa--gfx950"
        .text
        .globl {kn}
        .p2align 8
        .type {kn},@function
        {kn}:
        """)
        self.st(0)
        e(f"""
        s_load_dwordx16 s[4:19], s[0:1], 0
        s_load_dwordx4 s[20:23], s[0:1], 64
        s_load_dwordx2 s[24:25], s[0:1], 80
        s_cmp_ge_u32 s2, 256
        s_cbranch_scc1 L_end
        v_lshrrev_b32 v1, 6, v0
        v_and_b32 v0, 63, v0
        v_readfirstlane_b32 s26, v1
        s_add_u32 s27, s2, {7 - self.FX}
        s_and_b32 s27, s27, 7
        s_lshr_b32 s28, s2, 3
        s_cmp_eq_u32 s27, 7
        s_cbranch_scc1 L_ffn
        s_cmp_ge_u32 s28, 30
        s_cbranch_scc1 L_router
        s_mul_i32 s56, s28, 26
        s_lshr_b32 s56, s56, 8
        s_mul_i32 s30, s56, 10
        s_sub_u32 s30, s28, s30
        s_mul_i32 s29, s27, 3
        s_add_u32 s29, s29, s56
        s_mul_i32 s31, s27, {self.cx}
        s_lshr_b32 s31, s31, 3
        s_add_u32 s31, s31, s30
        s_cmp_ge_u32 s31, 10
        s_cselect_b32 s56, 10, 0
        s_sub_u32 s31, s31, s56
        s_sub_u32 s76, s31, 1
        s_cmp_eq_u32 s31, 0
        s_cselect_b32 s76, 9, s76
        s_mov_b32 s3, 0
        s_cmp_lt_u32 s26, 4
        s_cbranch_scc1 L_const
        s_cmp_ge_u32 s26, 6
        s_cbranch_scc1 L_st_pre
        """)
        e(f"""
        s_mov_b32 s3, 1
        s_sub_u32 s62, s26, 4
        v_lshrrev_b32 v2, 3, v0
        v_and_b32 v3, 7, v0
        v_lshrrev_b32 v4, 4, v0
        s_lshl_b32 s56, s62, 2
        v_add_u32 v5, s56, v4
        v_xor_b32 v5, v5, v3
        v_lshlrev_b32 v5, 4, v5
        v_mul_u32_u24 v10, 1280, v2
        v_add_u32 v10, v10, v5
        v_and_b32 v5, 1, v4
        v_lshlrev_b32 v5, 1, v5
        v_or_b32 v5, s56, v5
        v_xor_b32 v5, v5, v3
        v_lshlrev_b32 v5, 4, v5
        v_mul_u32_u24 v11, 3840, v2
        v_add_u32 v11, v11, v5
        s_mul_i32 s57, s62, {8*3840}
        s_lshl_b32 s58, s30, 7
        s_add_u32 s57, s57, s58
        v_add_u32 v11, s57, v11
        s_mul_i32 s57, s29, 97
        s_lshl_b32 s58, s62, 3
        s_add_u32 s57, s57, s58
        s_mul_i32 s57, s57, 1280
        s_lshl_b32 s56, s62, 10
        s_cmp_eq_u32 s62, 0
        s_cselect_b32 s60, 0xffffff00, -1
        s_mov_b32 s61, -1
        s_waitcnt lgkmcnt(0)
        """)
        self.srd(32, 4, 2048 * 1280, shift=1280)
        self.srd(36, 6, 640 * 3840)
        self.loader_stage()
        self.srd(40, 8, 640 * 1280)
        e(f"""
        v_lshlrev_b32 v5, 1, v4
        v_xor_b32 v5, v5, v3
        v_lshlrev_b32 v5, 4, v5
        v_mul_u32_u24 v12, 1280, v2
        v_add_u32 v12, v12, v5
        s_mul_i32 s58, s62, {8*1280}
        s_lshl_b32 s59, s76, 7
        s_add_u32 s58, s58, s59
        v_add_u32 v12, s58, v12
        s_branch L_const
        """)
        e(f"""
        L_st_pre:
        s_mov_b32 s3, 2
        v_mov_b32 v4, 0x3f803f80
        v_mov_b32 v5, v4
        v_mov_b32 v6, v4
        v_mov_b32 v7, v4
        v_lshrrev_b32 v2, 3, v0
        v_and_b32 v2, 3, v2
        v_mul_u32_u24 v2, {SLOT}, v2
        v_and_b32 v3, 7, v0
        v_lshlrev_b32 v3, 4, v3
        v_add_u32 v2, v2, v3
        ds_write_b128 v2, v[4:7] offset:{XOFF}
        s_waitcnt lgkmcnt(0)
        """)
        self.srd(44, 24, WS_BYTES)
        e("s_cmp_eq_u32 s26, 7")
        e("s_cbranch_scc0 L_const")
        self.prefill("")
        self.consts()
        e("""
        s_cmp_eq_u32 s3, 0
        s_cbranch_scc1 L_mf
        s_cmp_eq_u32 s3, 2
        s_cbranch_scc1 L_st
        """)
        e("s_mov_b32 s63, 1")
        e("L_ld_loop:")
        self.loader_stage()
        e("""
        s_add_u32 s63, s63, 1
        s_waitcnt vmcnt(19)
        s_barrier
        s_cmp_lt_u32 s63, 10
        s_cbranch_scc1 L_ld_loop
        """)
        e("s_lshl_b32 s58, s62, 10")
        e(f"s_add_u32 m0, s58, {WO}")
        e(f"s_mul_i32 s59, s30, {64*1280}")
        self.wo_loads(19)
        e("s_waitcnt vmcnt(19)")
        e("s_barrier")
        self.st(1)
        self.wo_loads(12)
        e("s_barrier")
        self.wo_loads(9)
        e("s_branch L_pre_att")
        self.stats_role()
        self.mfma_role()
        self.attention()
        self.wave7_tail()
        self.router()
        self.ffn()
        e("L_fin:")
        if self.stamp:
            self.st(9)
            e("s_waitcnt lgkmcnt(0)")
            self.srd(44, 24, 1 << 24)
            e("s_lshl_b32 s56, s2, 3")
            e("s_add_u32 s56, s56, s26")
            e("s_lshl_b32 s56, s56, 6")
            e(f"s_add_u32 s56, s56, {STAMP_OFF}")
            e("s_mov_b64 exec, -1")
            for i in range(10):
                e(f"v_mov_b32 v{4+i}, s{82+2*i}")
            e("v_mov_b32 v14, 0")
            e("v_mov_b32 v15, 0")
            e("v_mov_b32 v2, 0")
            e("s_mov_b64 exec, 1")
            for i in range(3):
                e(f"buffer_store_dwordx4 v[{4+4*i}:{7+4*i}], v2, s[44:47], s56 offen offset:{16*i}")
        e("L_end:")
        e("s_endpgm")
        body = pad(self.l)
        tail = f""".section .rodata,"a"
.p2align 6
.amdhsa_kernel {kn}
  .amdhsa_next_free_vgpr 256
  .amdhsa_next_free_sgpr 102
  .amdhsa_accum_offset 256
  .amdhsa_group_segment_fixed_size 0
  .amdhsa_kernarg_size 88
  .amdhsa_user_sgpr_count 2
  .amdhsa_user_sgpr_kernarg_segment_ptr 1
  .amdhsa_system_sgpr_workgroup_id_x 1
  .amdhsa_float_denorm_mode_32 3
.end_amdhsa_kernel
"""
        return HDR + "\n".join(body) + "\n" + tail

    def prefill(self, aux):
        e = self.e
        e(f"""
        v_mov_b32 v4, -1
        v_mov_b32 v5, -1
        v_mov_b32 v6, -1
        v_mov_b32 v7, -1
        v_lshlrev_b32 v2, 4, v0
        s_mul_i32 s58, s29, 10
        s_add_u32 s58, s58, s30
        s_mul_i32 s58, s58, 7168
        s_add_u32 s59, s58, 4096
        """)
        for i in range(7):
            e(f"buffer_store_dwordx4 v[4:7], v2, s[44:47], s{58 + i//4} offen offset:{(i%4)*1024}{aux}")
        e(f"""
        v_lshlrev_b32 v2, 7, v0
        v_mov_b32 v3, {OOB}
        v_cmp_gt_u32 vcc, 7, v0
        v_cndmask_b32 v2, v3, v2, vcc
        v_mov_b32 v8, 0
        s_mul_i32 s58, s29, 896
        s_lshl_b32 s59, s30, 2
        s_add_u32 s58, s58, s59
        s_add_u32 s58, s58, {FL_OFF}
        buffer_store_dword v8, v2, s[44:47], s58 offen{aux}
        """)

    QA = 200; VA = 202; WA = 206; RQ = 210; RK = 211; BC = 216; BP = 220; SEL = 224; QM = 228; XA = 240; L8 = 244; L16 = 245

    def consts(self):
        e = self.e
        c = self
        e(f"""
        L_const:
        s_cmp_ge_u32 s30, 5
        s_cselect_b32 s77, 5, 0
        s_sub_u32 s77, s30, s77
        s_lshl_b32 s79, s26, 11
        v_and_b32 v20, 15, v0
        v_lshrrev_b32 v21, 4, v0
        v_lshrrev_b32 v22, 1, v20
        v_lshlrev_b32 v23, 7, v20
        v_add_u32 v23, s79, v23
        v_xor_b32 v24, v21, v22
        v_lshl_add_u32 v{c.QA}, v24, 4, v23
        v_xor_b32 v{c.QA+1}, 64, v{c.QA}
        v_lshrrev_b32 v24, 1, v21
        v_xor_b32 v24, v24, v22
        v_lshl_add_u32 v24, v24, 4, v23
        v_and_b32 v25, 1, v21
        v_lshl_add_u32 v{c.XA}, v25, 3, v24
        v_xor_b32 v{c.XA+1}, 32, v{c.XA}
        v_xor_b32 v{c.XA+2}, 64, v{c.XA}
        v_xor_b32 v{c.XA+3}, 0x60, v{c.XA}
        v_lshrrev_b32 v24, 2, v0
        v_and_b32 v25, 3, v0
        v_bfe_u32 v26, v24, 1, 2
        v_lshlrev_b32 v26, 5, v26
        v_lshl_add_u32 v26, v24, 7, v26
        v_lshl_add_u32 v27, v25, 3, v26
        v_add_u32 v{c.WA}, {WO}, v27
        v_lshrrev_b32 v28, 3, v24
        v_lshlrev_b32 v28, 4, v28
        v_xor_b32 v27, v27, v28
        v_add_u32 v{c.VA}, s79, v27
        """)
        for T in range(1, 4):
            e(f"v_xor_b32 v{c.WA+T}, {T*32}, v{c.WA}")
            e(f"v_xor_b32 v{c.VA+T}, {T*32}, v{c.VA}")
        e(f"""
        s_lshl_b32 s58, s26, 4
        v_add_u32 v24, s58, v20
        v_lshlrev_b32 v{c.RQ}, 2, v24
        v_and_b32 v24, 1, v20
        v_lshl_add_u32 v24, v21, 2, v24
        v_add_u32 v24, s58, v24
        v_lshlrev_b32 v{c.L8}, 3, v0
        v_lshlrev_b32 v{c.L16}, 4, v0
        v_mov_b32 v29, 0x0c0c0c0c
        v_mov_b32 v30, {BIG:#x}
        """)
        self.smask(66, lambda l: l & 1)
        for jx in range(2):
            self.smask(64, lambda l: 4*(l >> 4) + 2*jx + (l & 1) <= (l & 15))
            lo, hi = (0x0c0c0100, 0x01000c0c) if jx == 0 else (0x0c0c0302, 0x03020c0c)
            e(f"""
            v_add_u32 v25, {2*jx}, v24
            v_add_u32 v26, -16, v25
            v_cndmask_b32 v25, v26, v25, s[64:65]
            v_max_i32 v25, 0, v25
            v_lshlrev_b32 v{c.RK+jx}, 2, v25
            v_mov_b32 v26, {lo:#x}
            v_mov_b32 v27, {hi:#x}
            v_cndmask_b32 v26, v26, v27, s[66:67]
            v_cndmask_b32 v{c.SEL+2+jx}, v29, v26, s[64:65]
            v_cndmask_b32 v{c.SEL+jx}, v26, v29, s[64:65]
            """)
        e("s_cmp_eq_u32 s26, 0")
        for i in range(4):
            lo, hi = lanemask(lambda l: ((i ^ l) & 1) == 0 and 4*(l >> 4) + i <= (l & 15))
            if i == 0:
                e(f"s_mov_b32 s64, {lo:#x}")
                e(f"s_cselect_b32 s64, {lo & 0xffff0000:#x}, s64")
            else:
                e(f"s_mov_b32 s64, {lo:#x}")
            e(f"s_mov_b32 s65, {hi:#x}")
            e(f"v_cndmask_b32 v{c.BC+i}, v30, 0, s[64:65]")
            lo, hi = lanemask(lambda l: ((i ^ l) & 1) == 0 and 4*(l >> 4) + i > (l & 15))
            e(f"s_cselect_b32 s66, 0, {lo:#x}")
            e(f"s_cselect_b32 s67, 0, {hi:#x}")
            e(f"v_cndmask_b32 v{c.BP+i}, v30, 0, s[66:67]")
        e("v_lshlrev_b32 v24, 1, v21")
        e("v_add_u32 v24, s77, v24")
        for h in range(2):
            for u in range(2):
                e(f"v_add_u32 v25, {8*h+u}, v24")
                e("v_mul_u32_u24 v25, 52, v25")
                e("v_lshrrev_b32 v25, 8, v25")
                for k, (sg, hh) in enumerate(self.COMBOS):
                    if hh == h:
                        e(f"v_cmp_eq_u32 vcc, {sg}, v25")
                        e(f"v_cndmask_b32 v{c.QM+2*k+u}, 0, -1, vcc")
        e("v_add_u32 v24, s77, v21")
        for k, th in enumerate((5, 1, 6, 2, 7, 3)):
            e(f"v_cmp_le_u32 s[{64+2*k}:{65+2*k}], {th}, v24")
        e("s_waitcnt lgkmcnt(0)")
        self.srd(44, 24, WS_BYTES)
        self.srd(48, 20, 2048 * 1280, shift=1280)
        self.srd(52, 22, 256)

    COMBOS = [(0, 0), (3, 1), (1, 0), (1, 1), (2, 0), (2, 1)]

    def stats_role(self):
        e = self.e; c = self
        e(f"""
        L_st:
        s_sub_u32 s62, s26, 6
        s_lshl_b32 s58, s62, 13
        s_sub_u32 s58, s58, s79
        s_add_u32 s58, s58, {XOFF}
        v_add_u32 v2, s58, v{c.QA}
        v_add_u32 v3, s58, v{c.QA+1}
        s_mov_b32 s57, 0x3f803f80
        s_mov_b32 s63, 0
        s_mov_b32 s56, 0
        s_mov_b32 s60, {SLOT}
        """)
        for i in range(8):
            e(f"v_mov_b32 v{40+i}, 0")
        e(f"""
        s_getreg_b32 s58, hwreg(HW_REG_XCC_ID, 0, 3)
        s_add_u32 s58, s58, 24
        s_lshl_b32 s58, 1, s58
        s_lshl_b32 s59, 1, s30
        s_or_b32 s58, s58, s59
        v_mov_b32 v11, s58
        s_lshl_b32 s59, s29, 2
        s_add_u32 s59, s59, {DBG_GRP}
        v_mov_b32 v9, s59
        """)
        e("L_st_loop:")
        e("s_barrier")
        for h in range(2):
            for m in range(4):
                e(f"ds_read_b128 v[{48+16*h+4*m}:{51+16*h+4*m}], v{2+h} offset:{m*2048}")
        e(f"""
        s_cmp_eq_u32 s26, 7
        s_cbranch_scc0 L_st_a
        s_cmp_eq_u32 s63, 0
        s_cbranch_scc0 L_st_b
        s_waitcnt vmcnt(0)
        s_mov_b64 exec, 1
        buffer_atomic_or v11, v9, s[52:55], 0 offen sc1
        s_mov_b64 exec, -1
        L_st_b:
        s_cmp_eq_u32 s63, 8
        s_cbranch_scc0 L_st_a
        buffer_load_dword v10, v9, s[52:55], 0 offen sc1
        L_st_a:
        s_add_u32 s56, s56, 1
        s_cmp_eq_u32 s56, 4
        s_cselect_b32 s58, {(-3*SLOT) & 0xffffffff:#x}, s60
        s_cselect_b32 s56, 0, s56
        s_add_u32 s63, s63, 1
        """)
        for h in range(2):
            for m in range(4):
                e(f"s_waitcnt lgkmcnt({7 - 4*h - m})")
                for q in range(4):
                    r = 48 + 16*h + 4*m + q
                    e(f"v_dot2c_f32_bf16 v{40+m}, s57, v{r}")
                    e(f"v_dot2c_f32_bf16 v{44+m}, v{r}, v{r}")
        e("v_add_u32 v2, s58, v2")
        e("v_add_u32 v3, s58, v3")
        e("s_cmp_lt_u32 s63, 10")
        e("s_cbranch_scc1 L_st_loop")
        for b in (40, 44):
            e(f"v_permlane32_swap_b32 v{b}, v{b+2}")
            e(f"v_permlane32_swap_b32 v{b+1}, v{b+3}")
        for b in (40, 44):
            e(f"v_add_f32 v{b}, v{b}, v{b+2}")
            e(f"v_add_f32 v{b+1}, v{b+1}, v{b+3}")
        for b in (40, 44):
            e(f"v_permlane16_swap_b32 v{b}, v{b+1}")
        for b in (40, 44):
            e(f"v_add_f32 v{b}, v{b}, v{b+1}")
        self.ln_scalars(40, 44, 41, 42, 43)
        e(f"""
        v_rcp_f32 v42, v42
        v_sub_f32 v41, 0, v41
        s_lshl_b32 s58, s62, 8
        v_lshl_add_u32 v43, v0, 2, s58
        v_add_u32 v43, {NEGM}, v43
        ds_write_b32 v43, v41
        ds_write_b32 v43, v42 offset:{RSTD-NEGM}
        s_waitcnt lgkmcnt(0)
        s_barrier
        s_cmp_eq_u32 s26, 7
        s_cbranch_scc0 L_pre_att
        """)
        e(f"""
        s_mov_b32 s63, 0
        L_grp:
        s_waitcnt vmcnt(0)
        v_readfirstlane_b32 s58, v10
        s_and_b32 s59, s58, 0x3ff
        s_cmp_eq_u32 s59, 0x3ff
        s_cbranch_scc1 L_grp_ok
        s_add_u32 s63, s63, 1
        s_cmp_ge_u32 s63, {SPIN}
        s_cbranch_scc1 L_grp_ok
        buffer_load_dword v10, v9, s[52:55], 0 offen sc1
        s_branch L_grp
        L_grp_ok:
        s_lshr_b32 s59, s58, 24
        s_bcnt1_i32_b32 s78, s59
        """)
        if self.force_remote:
            e("s_mov_b32 s78, 2")
        e("""
        s_cmp_eq_u32 s78, 1
        s_cbranch_scc1 L_grp_done
        """)
        self.prefill(" sc1")
        e(f"""
        s_waitcnt vmcnt(0)
        s_add_u32 s58, s30, 10
        s_lshl_b32 s58, 1, s58
        v_mov_b32 v8, s58
        s_mov_b64 exec, 1
        buffer_atomic_or v8, v9, s[52:55], 0 offen sc1
        s_mov_b64 exec, -1
        s_mov_b32 s63, 0
        L_grp2:
        buffer_load_dword v10, v9, s[52:55], 0 offen sc1
        s_add_u32 s63, s63, 1
        s_waitcnt vmcnt(0)
        v_readfirstlane_b32 s58, v10
        s_cmp_ge_u32 s63, {SPIN}
        s_cbranch_scc1 L_grp_done
        s_and_b32 s59, s58, 0xffc00
        s_cmp_eq_u32 s59, 0xffc00
        s_cbranch_scc0 L_grp2
        L_grp_done:
        v_mov_b32 v8, s78
        v_mov_b32 v9, {INFO}
        ds_write_b32 v9, v8
        s_waitcnt lgkmcnt(0)
        s_barrier
        s_branch L_w7
        """)

    def mfma_role(self):
        e = self.e; c = self
        ACC = 32
        WF = 116
        XF = 140
        acc = lambda m, a: ACC + (m*3 + a)*4
        e(f"""
        L_mf:
        s_sub_u32 s58, {XOFF}, s79
        v_add_u32 v2, s58, v{c.QA}
        v_add_u32 v3, s58, v{c.QA+1}
        v_bfe_u32 v5, v0, 2, 2
        v_lshl_add_u32 v6, v21, 3, v5
        v_lshlrev_b32 v6, 7, v6
        v_lshrrev_b32 v5, 1, v5
        v_and_b32 v7, 1, v21
        v_lshl_add_u32 v5, v7, 1, v5
        v_xor_b32 v5, s26, v5
        v_lshl_add_u32 v6, v5, 5, v6
        v_and_b32 v5, 3, v0
        v_lshl_add_u32 v4, v5, 3, v6
        s_lshl_b32 s58, s26, 5
        v_subrev_u32 v8, s79, v{c.XA}
        v_xor_b32 v8, s58, v8
        v_bfe_u32 v5, v20, 1, 2
        v_xor_b32 v5, s26, v5
        v_lshlrev_b32 v5, 5, v5
        v_lshl_add_u32 v5, v20, 7, v5
        v_lshrrev_b32 v6, 1, v21
        v_lshrrev_b32 v9, 3, v20
        v_xor_b32 v6, v6, v9
        v_lshl_add_u32 v5, v6, 4, v5
        v_lshl_add_u32 v9, v7, 3, v5
        v_lshlrev_b32 v10, 2, v20
        v_add_u32 v10, {NEGM}, v10
        s_mov_b32 s63, 0
        s_mov_b32 s56, 0
        s_mov_b32 s60, {SLOT}
        """)
        for i in range(84):
            e(f"v_mov_b32 v{ACC+i}, 0")
        def rd(h):
            r = []
            for a in range(3):
                for u in range(2):
                    b = WF + 12*h + 4*a + 2*u
                    r.append(f"ds_read_b64_tr_b16 v[{b}:{b+1}], v4 offset:{a*8192 + h*4096 + u*512}")
            for m in range(7):
                b = XF + 28*h + 4*m
                r.append(f"ds_read_b128 v[{b}:{b+3}], v{2+h} offset:{m*2048}")
            return r
        e("L_mf_loop:")
        e("s_barrier")
        for x in rd(0): e(x)
        e(f"""
        s_add_u32 s56, s56, 1
        s_cmp_eq_u32 s56, 4
        s_cselect_b32 s58, {(-3*SLOT) & 0xffffffff:#x}, s60
        s_cselect_b32 s56, 0, s56
        s_add_u32 s63, s63, 1
        """)
        r1 = rd(1); issued = 0
        for m in range(7):
            e(f"s_waitcnt lgkmcnt({6 - m + issued})")
            for a in range(3):
                e(f"v_mfma_f32_16x16x32_bf16 v[{acc(m,a)}:{acc(m,a)+3}], v[{WF+4*a}:{WF+4*a+3}], v[{XF+4*m}:{XF+4*m+3}], v[{acc(m,a)}:{acc(m,a)+3}]")
                if a < 2 and issued < 13:
                    e(r1[issued]); issued += 1
        e("v_add_u32 v2, s58, v2")
        e("v_add_u32 v3, s58, v3")
        e("v_add_u32 v4, s58, v4")
        for m in range(7):
            e(f"s_waitcnt lgkmcnt({6 - m})")
            for a in range(3):
                e(f"v_mfma_f32_16x16x32_bf16 v[{acc(m,a)}:{acc(m,a)+3}], v[{WF+12+4*a}:{WF+12+4*a+3}], v[{XF+28+4*m}:{XF+28+4*m+3}], v[{acc(m,a)}:{acc(m,a)+3}]")
        e("s_cmp_lt_u32 s63, 10")
        e("s_cbranch_scc1 L_mf_loop")
        self.st(1)
        CS = 116; NM = 128; PK = 140
        for a in range(3):
            for i in range(4):
                e(f"v_mov_b32_dpp v{CS+4*a+i}, v{acc(0,a)+i} row_newbcast:0 row_mask:0xf bank_mask:0xf")
        e("s_barrier")
        for m in range(7):
            e(f"ds_read_b32 v{NM+m}, v10 offset:{m*64}")
        k = 0
        for a in range(3):
            for m in range(7):
                if a == 0: e(f"s_waitcnt lgkmcnt({6})")
                nm = NM + m; p = nm & ~1
                sel = "op_sel:[0,1,0] op_sel_hi:[1,1,1]" if nm & 1 else "op_sel_hi:[1,0,1]"
                A = acc(m, a)
                for z in range(2):
                    e(f"v_pk_fma_f32 v[{A+2*z}:{A+2*z+1}], v[{CS+4*a+2*z}:{CS+4*a+2*z+1}], v[{p}:{p+1}], v[{A+2*z}:{A+2*z+1}] {sel}")
                d = PK + 2*(k % 8); k += 1
                e(f"v_cvt_pk_bf16_f32 v{d}, v{A}, v{A+1}")
                e(f"v_cvt_pk_bf16_f32 v{d+1}, v{A+2}, v{A+3}")
                e(f"ds_write_b64 v{9 if a == 2 else 8}, v[{d}:{d+1}] offset:{(QD, KD, VD)[a] + m*2048}")

    def attention(self):
        e = self.e; c = self
        Q = 32; KC = 40; KP = 48; V = 56
        QX = 72
        S = 96
        T_ = 128
        RMT = 136
        RQ, RK, CJ = 140, 141, 144
        P = 148
        TMP = 164
        A2 = 176
        XR = 192
        e(f"""
        L_pre_att:
        s_mul_i32 s58, s29, 10
        s_add_u32 s58, s58, s30
        s_mul_i32 s58, s58, 7168
        s_lshl_b32 s59, s26, 9
        s_add_u32 s58, s58, s59
        s_add_u32 s59, s58, 3584
        s_sub_u32 s60, s58, 3584
        s_add_u32 s61, s58, 7168
        s_cmp_eq_u32 s77, 0
        s_cselect_b32 s58, {OOB}, s58
        s_cselect_b32 s60, {OOB}, s60
        s_cmp_eq_u32 s77, 4
        s_cselect_b32 s59, {OOB}, s59
        s_cselect_b32 s61, {OOB}, s61
        v_mov_b32 v2, {INFO}
        v_add_u32 v3, {NEGM}, v{c.RQ}
        v_add_u32 v4, {RSTD}, v{c.RK}
        v_add_u32 v5, {RSTD}, v{c.RK+1}
        s_waitcnt lgkmcnt(0)
        s_barrier
        """)
        self.st(2)
        for h in range(2):
            e(f"ds_read_b128 v[{Q+4*h}:{Q+4*h+3}], v{c.QA+h} offset:{QD}")
        for h in range(2):
            e(f"ds_read_b128 v[{KC+4*h}:{KC+4*h+3}], v{c.QA+h} offset:{KD}")
            e(f"ds_read_b128 v[{KP+4*h}:{KP+4*h+3}], v{c.QA+h} offset:{KD-2048}")
        e(f"ds_read_b32 v6, v2")
        e(f"ds_read_b32 v{RQ}, v3 offset:{RSTD-NEGM}")
        e(f"ds_read_b32 v{RK}, v4")
        e(f"ds_read_b32 v{RK+1}, v5")
        e(f"ds_read_b32 v7, v3")
        e("s_waitcnt lgkmcnt(9)")
        def qmask(k):
            sg, h = self.COMBOS[k]
            for i in range(4):
                e(f"v_and_b32 v{QX+4*k+i}, v{Q+4*h+i}, v{c.QM+2*k+(i>>1)}")
        def smm(k, first):
            sg, h = self.COMBOS[k]
            for kb, z, bias in ((KC, 0, c.BC), (KP, 1, c.BP)):
                d = S + 8*sg + 4*z
                ci = bias if first else d
                e(f"v_mfma_f32_16x16x32_bf16 v[{d}:{d+3}], v[{kb+4*h}:{kb+4*h+3}], v[{QX+4*k}:{QX+4*k+3}], v[{ci}:{ci+3}]")
        def sel(sg):
            for jx in range(2):
                b = S + 8*sg + 2*jx
                e(f"v_max3_f32 v{T_+2*sg+jx}, v{b}, v{b+1}, v{b+4}")
            for jx in range(2):
                b = S + 8*sg + 2*jx
                e(f"v_max_f32 v{T_+2*sg+jx}, v{T_+2*sg+jx}, v{b+5}")
        qmask(0); qmask(1)
        e("s_waitcnt lgkmcnt(5)")
        smm(0, True); smm(1, True)
        qmask(2); qmask(4)
        smm(2, True); smm(4, True)
        e("s_waitcnt lgkmcnt(0)")
        e("v_readfirstlane_b32 s78, v6")
        sel(0); sel(3)
        self.xstore("sx", [f"buffer_store_dwordx2 v[{T_}:{T_+1}], v{c.L8}, s[44:47], s58 offen",
                           f"buffer_store_dwordx2 v[{T_+6}:{T_+7}], v{c.L8}, s[44:47], s59 offen"])
        qmask(3); qmask(5)
        smm(3, False); smm(5, False)
        for T in range(4):
            e(f"ds_read_b64_tr_b16 v[{V+4*T}:{V+4*T+1}], v{c.VA+T} offset:{VD-2048}")
            e(f"ds_read_b64_tr_b16 v[{V+4*T+2}:{V+4*T+3}], v{c.VA+T} offset:{VD}")
        for T in range(4):
            e(f"ds_read_b64 v[{XR+2*T}:{XR+2*T+1}], v{c.XA+T} offset:{XRES}")
        e(f"v_mul_f32 v{TMP}, 0x3ea52b5c, v{RQ}")
        e(f"v_mul_f32 v{CJ}, v{TMP}, v{RK}")
        e(f"v_mul_f32 v{CJ+1}, v{TMP}, v{RK+1}")
        e(f"buffer_load_dwordx2 v[{RMT}:{RMT+1}], v{c.L8}, s[44:47], s60 offen sc1")
        e(f"buffer_load_dwordx2 v[{RMT+2}:{RMT+3}], v{c.L8}, s[44:47], s61 offen sc1")
        sel(1); sel(2)
        def softmax(a, b):
            x, y, z = TMP, TMP+1, TMP+2
            for sg in (a, b):
                for jx in range(2):
                    e(f"v_mul_f32 v{T_+2*sg+jx}, v{T_+2*sg+jx}, v{CJ+jx}")
            e(f"v_max_f32 v{x}, v{T_+2*a}, v{T_+2*a+1}")
            e(f"v_max_f32 v{y}, v{T_+2*b}, v{T_+2*b+1}")
            def red(op, inv):
                e(f"v_permlane32_swap_b32 v{x}, v{y}")
                e(f"{op} v{x}, v{x}, v{y}")
                e(f"v_mov_b32 v{y}, v{x}")
                e(f"v_permlane16_swap_b32 v{x}, v{y}")
                e(f"{op} v{x}, v{x}, v{y}")
                if inv: e(f"v_rcp_f32 v{x}, v{x}")
                e(f"v_mov_b32 v{y}, v{x}")
                e(f"v_permlane32_swap_b32 v{x}, v{y}")
            red("v_max_f32", False)
            for sg, m in ((a, x), (b, y)):
                for jx in range(2):
                    e(f"v_sub_f32 v{T_+2*sg+jx}, v{T_+2*sg+jx}, v{m}")
            for sg in (a, b):
                for jx in range(2):
                    e(f"v_exp_f32 v{T_+2*sg+jx}, v{T_+2*sg+jx}")
            e(f"v_add_f32 v{x}, v{T_+2*a}, v{T_+2*a+1}")
            e(f"v_add_f32 v{y}, v{T_+2*b}, v{T_+2*b+1}")
            for sg in (a, b):
                for jx in range(2):
                    e(f"v_mul_f32 v{T_+2*sg+jx}, v{T_+2*sg+jx}, v{RK+jx}")
            red("v_add_f32", True)
            for sg, m in ((a, x), (b, y)):
                for jx in range(2):
                    e(f"v_mul_f32 v{T_+2*sg+jx}, v{T_+2*sg+jx}, v{m}")
            for sg in (a, b):
                e(f"v_cvt_pk_bf16_f32 v{T_+2*sg}, v{T_+2*sg}, v{T_+2*sg+1}")
            for sg in (a, b):
                for i in range(4):
                    e(f"v_perm_b32 v{P+4*sg+i}, v{T_+2*sg}, v{T_+2*sg}, v{c.SEL+i}")
        softmax(1, 2)
        PVS = [(0, 1), (1, 1), (2, 1), (1, 2), (2, 2), (3, 2), (0, 0), (1, 0), (2, 3), (3, 3)]
        O = {k: 72 + 4*i for i, k in enumerate(PVS)}
        def pv(k):
            T, sg = k
            e(f"v_mfma_f32_16x16x32_bf16 v[{O[k]}:{O[k]+3}], v[{V+4*T}:{V+4*T+3}], v[{P+4*sg}:{P+4*sg+3}], 0")
        e("s_waitcnt lgkmcnt(0)")
        for k in PVS[:6]: pv(k)
        e(f"v_add_f32 v{TMP+4}, 1.0, v{RQ}")
        e(f"v_mul_f32 v{TMP+5}, v7, v{RQ}")
        for T in range(4):
            for z in range(2):
                e(f"v_lshlrev_b32 v{A2+4*T+2*z}, 16, v{XR+2*T+z}")
                e(f"v_and_b32 v{A2+4*T+2*z+1}, 0xffff0000, v{XR+2*T+z}")
        for i in range(8):
            e(f"v_pk_fma_f32 v[{A2+2*i}:{A2+2*i+1}], v[{A2+2*i}:{A2+2*i+1}], v[{TMP+4}:{TMP+5}], v[{TMP+4}:{TMP+5}] op_sel:[0,0,1] op_sel_hi:[1,0,1]")
        def cvt(k):
            e(f"v_cvt_pk_bf16_f32 v{O[k]}, v{O[k]}, v{O[k]+1}")
            e(f"v_cvt_pk_bf16_f32 v{O[k]+1}, v{O[k]+2}, v{O[k]+3}")
        for k in PVS[:6]: cvt(k)
        self.st(3)
        e(f"""
        s_mov_b32 s63, 0
        L_sx_poll:
        s_waitcnt vmcnt(0)
        v_max3_u32 v{TMP}, v{RMT}, v{RMT+1}, v{RMT+2}
        v_max_u32 v{TMP}, v{TMP}, v{RMT+3}
        v_cmp_eq_u32 vcc, -1, v{TMP}
        s_add_u32 s63, s63, 1
        s_cmp_eq_u64 vcc, 0
        s_cbranch_scc1 L_sx_ok
        s_cmp_ge_u32 s63, {SPIN}
        s_cbranch_scc1 L_sx_ok
        buffer_load_dwordx2 v[{RMT}:{RMT+1}], v{c.L8}, s[44:47], s60 offen sc1
        buffer_load_dwordx2 v[{RMT+2}:{RMT+3}], v{c.L8}, s[44:47], s61 offen sc1
        s_branch L_sx_poll
        L_sx_ok:
        v_add_f32 v{T_}, v{T_}, v{RMT}
        v_add_f32 v{T_+1}, v{T_+1}, v{RMT+1}
        v_add_f32 v{T_+6}, v{T_+6}, v{RMT+2}
        v_add_f32 v{T_+7}, v{T_+7}, v{RMT+3}
        """)
        self.st(4)
        softmax(0, 3)
        for k in PVS[6:]: pv(k)
        OF = 32
        e(f"""
        s_mul_i32 s58, s29, 7
        s_add_u32 s58, s58, s26
        s_lshl_b32 s61, s58, 7
        s_add_u32 s61, s61, {FL_OFF}
        s_mul_i32 s58, s58, 20480
        s_add_u32 s58, s58, {OX_OFF}
        s_lshl_b32 s59, s30, 11
        s_add_u32 s60, s58, s59
        s_lshl_b32 s62, s30, 2
        s_add_u32 s62, s62, s61
        """)
        for z in range(2):
            e(f"v_cndmask_b32 v{OF+2+z}, v{O[(1,1)]+z}, v{O[(1,2)]+z}, s[68:69]")
            e(f"v_cndmask_b32 v{OF+4+z}, v{O[(2,1)]+z}, v{O[(2,2)]+z}, s[70:71]")
        for k in PVS[6:]: cvt(k)
        for z in range(2):
            e(f"v_cndmask_b32 v{OF+z}, v{O[(0,0)]+z}, v{O[(0,1)]+z}, s[64:65]")
            e(f"v_cndmask_b32 v{OF+2+z}, v{O[(1,0)]+z}, v{OF+2+z}, s[66:67]")
            e(f"v_cndmask_b32 v{OF+4+z}, v{OF+4+z}, v{O[(2,3)]+z}, s[72:73]")
            e(f"v_cndmask_b32 v{OF+6+z}, v{O[(3,2)]+z}, v{O[(3,3)]+z}, s[74:75]")
        self.xstore("ox", [f"buffer_store_dwordx4 v[{OF}:{OF+3}], v{c.L16}, s[44:47], s60 offen",
                           f"buffer_store_dwordx4 v[{OF+4}:{OF+7}], v{c.L16}, s[44:47], s60 offen offset:1024"])
        self.st(5)
        e(f"""
        v_mov_b32 v3, 1
        v_mov_b32 v4, 0
        v_lshlrev_b32 v5, 2, v0
        v_mov_b32 v6, {OOB}
        v_cmp_gt_u32 vcc, 10, v0
        v_cndmask_b32 v5, v6, v5, vcc
        s_waitcnt vmcnt(0)
        s_mov_b64 exec, 1
        """)
        self.xstore("fl", ["buffer_store_dword v3, v4, s[44:47], s62 offen"])
        e("s_mov_b64 exec, -1")
        e("s_barrier")
        e("ds_read_b96 v[8:10], v2 offset:16")
        WB = 112
        def wrd(ks):
            r = []
            hi = ks >= 14
            for T in range(4):
                for u in range(2):
                    b = WB + 16*(ks & 1) + 4*T + 2*u
                    r.append(f"ds_read_b64_tr_b16 v[{b}:{b+1}], v{c.WA+T} offset:{(ks - (14 if hi else 0))*4096 + u*2048}")
            return r
        def gmm(ks, nxt):
            for T in range(4):
                b = WB + 16*(ks & 1) + 4*T
                e(f"s_waitcnt lgkmcnt({6 if nxt else 6 - 2*T})")
                e(f"v_mfma_f32_16x16x32_bf16 v[{A2+4*T}:{A2+4*T+3}], v[{b}:{b+3}], v[{OF+4*ks}:{OF+4*ks+3}], v[{A2+4*T}:{A2+4*T+3}]")
                if nxt:
                    if ks + 1 == 14: e(f"v_add_u32 v{c.WA+T}, {14*4096}, v{c.WA+T}")
                    e(nxt[2*T]); e(nxt[2*T+1])
        e(f"buffer_load_dword v6, v5, s[44:47], s61 offen sc1")
        for x in wrd(0): e(x)
        gmm(0, wrd(1))
        gmm(1, wrd(2))
        e(f"""
        s_mov_b32 s63, 0
        L_fl_poll:
        s_waitcnt vmcnt(0)
        v_cmp_ne_u32 vcc, 0, v6
        s_add_u32 s63, s63, 1
        s_cmp_eq_u32 vcc_lo, 0x3ff
        s_cbranch_scc1 L_fl_ok
        s_cmp_ge_u32 s63, {SPIN}
        s_cbranch_scc1 L_fl_ok
        buffer_load_dword v6, v5, s[44:47], s61 offen sc1
        s_branch L_fl_poll
        L_fl_ok:
        """)
        self.st(6)
        for i in range(1, 10):
            e("s_add_u32 s59, s59, 2048")
            e("s_cmp_eq_u32 s59, 20480")
            e("s_cselect_b32 s59, 0, s59")
            e("s_add_u32 s60, s58, s59")
            e(f"buffer_load_dwordx4 v[{OF+8*i}:{OF+8*i+3}], v{c.L16}, s[44:47], s60 offen sc1")
            e(f"buffer_load_dwordx4 v[{OF+8*i+4}:{OF+8*i+7}], v{c.L16}, s[44:47], s60 offen offset:1024 sc1")
        e(f"""
        v_readfirstlane_b32 s56, v8
        v_readfirstlane_b32 s57, v9
        v_readfirstlane_b32 s62, v10
        v_lshrrev_b32 v3, 3, v0
        v_and_b32 v4, 7, v0
        v_lshrrev_b32 v5, 1, v3
        v_xor_b32 v5, v5, v4
        v_lshlrev_b32 v5, 4, v5
        v_lshl_add_u32 v5, v3, 7, v5
        v_add_u32 v11, s79, v5
        v_xor_b32 v12, 64, v11
        s_lshl_b32 s60, s26, 4
        v_add_u32 v3, s60, v3
        s_cmp_eq_u32 s29, 0
        s_cselect_b32 s60, 1, 15
        v_mul_u32_u24 v5, 1280, v3
        v_lshl_add_u32 v5, v4, 4, v5
        v_mov_b32 v6, {OOB}
        v_cmp_le_u32 vcc, s60, v3
        v_cndmask_b32 v13, v6, v5, vcc
        v_add_u32 v3, 8, v3
        v_add_u32 v5, {8*1280}, v5
        v_cmp_le_u32 vcc, s60, v3
        v_cndmask_b32 v14, v6, v5, vcc
        s_mul_i32 s60, s29, {97*1280}
        s_lshl_b32 s61, s76, 7
        s_add_u32 s60, s60, s61
        """)
        for ks in range(2, 20):
            e(f"s_waitcnt vmcnt({19 - ks})")
            gmm(ks, wrd(ks + 1) if ks < 19 else None)
        self.st(7)
        e(f"""
        s_cmp_eq_u32 s56, 0
        s_cbranch_scc1 L_noy
        s_barrier
        v_lshlrev_b32 v3, 4, v21
        v_add_u32 v3, {YBUF}, v3
        """)
        for tok, sr in ((0, 57), (1, 62)):
            e(f"""
            s_lshr_b32 s61, s{sr}, 4
            s_cmp_eq_u32 s61, s26
            s_cbranch_scc0 L_ny{tok}
            s_and_b32 s61, s{sr}, 15
            """)
            for T in range(4):
                e(f"ds_read_b128 v[{112+4*T}:{115+4*T}], v3 offset:{tok*256 + T*64}")
            e("v_cmp_eq_u32 vcc, s61, v20")
            e("s_and_saveexec_b64 s[80:81], vcc")
            e("s_waitcnt lgkmcnt(0)")
            e("s_nop 7")
            for i in range(16):
                e(f"v_add_f32 v{A2+i}, v{A2+i}, v{112+i}")
            e("s_mov_b64 exec, s[80:81]")
            e(f"L_ny{tok}:")
        e("L_noy:")
        e("s_nop 4")
        for T in range(4):
            e(f"v_cvt_pk_bf16_f32 v{A2+4*T}, v{A2+4*T}, v{A2+4*T+1}")
            e(f"v_cvt_pk_bf16_f32 v{A2+4*T+1}, v{A2+4*T+2}, v{A2+4*T+3}")
            e(f"ds_write_b64 v{c.XA+T}, v[{A2+4*T}:{A2+4*T+1}] offset:{OSCR}")
        e(f"""
        s_waitcnt lgkmcnt(0)
        ds_read_b128 v[32:35], v11 offset:{OSCR}
        ds_read_b128 v[36:39], v12 offset:{OSCR+1024}
        s_waitcnt lgkmcnt(1)
        buffer_store_dwordx4 v[32:35], v13, s[48:51], s60 offen
        s_waitcnt lgkmcnt(0)
        buffer_store_dwordx4 v[36:39], v14, s[48:51], s60 offen
        """)
        self.st(8)
        if self.stamp: e("s_waitcnt vmcnt(0)")
        e("s_branch L_fin")

    def wave7_tail(self):
        e = self.e; c = self
        e("L_w7:")
        self.st(2)
        self.poll_keys("w7", 4, 5, 6, 56, 57, 58)
        e(f"""
        s_mul_i32 s58, s29, 97
        s_cmp_eq_u32 s29, 0
        s_cselect_b32 s59, 1, 15
        s_mov_b32 s62, 0
        """)
        for k in (56, 57):
            e(f"""
            s_and_b32 s{k}, s{k}, 0x7ff
            s_sub_u32 s{k}, 2048, s{k}
            s_sub_i32 s{k}, s{k}, s58
            s_cmp_ge_i32 s{k}, s59
            s_cselect_b32 s{k}, s{k}, 0xffff
            s_cmp_lt_i32 s{k}, 112
            s_cselect_b32 s{k}, s{k}, 0xffff
            s_cselect_b32 s62, 1, s62
            """)
        e(f"""
        v_mov_b32 v8, s62
        v_mov_b32 v9, s56
        v_mov_b32 v10, s57
        v_mov_b32 v2, {INFO}
        ds_write_b96 v2, v[8:10] offset:16
        s_waitcnt lgkmcnt(0)
        s_barrier
        """)
        self.st(3)
        e(f"""
        s_cmp_eq_u32 s62, 0
        s_cbranch_scc1 L_fin
        v_mov_b32 v5, {DBG_FFN}
        s_mov_b32 s63, 0
        L_yp:
        buffer_load_dword v4, v5, s[52:55], 0 offen sc1
        s_add_u32 s63, s63, 1
        s_waitcnt vmcnt(0)
        v_readfirstlane_b32 s58, v4
        s_cmp_ge_u32 s63, {SPIN}
        s_cbranch_scc1 L_ypd
        s_cmp_eq_u32 s58, 27
        s_cbranch_scc0 L_yp
        L_ypd:
        v_mul_u32_u24 v5, 5120, v21
        v_lshl_add_u32 v5, v20, 4, v5
        s_lshl_b32 s58, s76, 8
        s_add_u32 s58, s58, {YP_OFF}
        """)
        self.st(4)
        for n in range(7):
            for tok in range(2):
                b = 32 + 28*tok + 4*n
                e(f"buffer_load_dwordx4 v[{b}:{b+3}], v5, s[44:47], s58 offen offset:{tok*2560} sc1")
            e(f"s_add_u32 s58, s58, {4*5120}")
        e(f"v_lshlrev_b32 v6, 4, v20")
        e(f"v_lshl_add_u32 v6, v21, 2, v6")
        e(f"v_add_u32 v6, {YBUF}, v6")
        e("s_waitcnt vmcnt(0)")
        for tok in range(2):
            b = 32 + 28*tok
            for n in range(1, 7):
                for i in range(4):
                    e(f"v_add_f32 v{b+i}, v{b+i}, v{b+4*n+i}")
            e(f"v_permlane32_swap_b32 v{b}, v{b+2}")
            e(f"v_permlane32_swap_b32 v{b+1}, v{b+3}")
            e(f"v_add_f32 v{b}, v{b}, v{b+2}")
            e(f"v_add_f32 v{b+1}, v{b+1}, v{b+3}")
            e(f"v_permlane16_swap_b32 v{b}, v{b+1}")
            e(f"v_add_f32 v{b}, v{b}, v{b+1}")
            e(f"ds_write_b32 v6, v{b} offset:{tok*256}")
        e("s_waitcnt lgkmcnt(0)")
        e("s_barrier")
        e("s_branch L_fin")

    def router(self):
        e = self.e
        e(f"""
        L_router:
        s_lshl_b32 s29, s27, 1
        s_add_u32 s29, s29, s28
        s_sub_u32 s29, s29, 30
        s_mul_i32 s30, s29, 147
        v_and_b32 v2, 15, v0
        v_lshlrev_b32 v2, 4, v2
        v_lshrrev_b32 v3, 4, v0
        s_lshl_b32 s56, s26, 2
        v_add_u32 v3, s56, v3
        v_add_u32 v4, s30, v3
        v_mul_u32_u24 v5, 1280, v4
        v_add_u32 v5, v5, v2
        v_mov_b32 v7, {OOB}
        v_add_u32 v6, {128*1280}, v5
        v_cmp_gt_u32 vcc, {147-128}, v3
        v_cndmask_b32 v6, v7, v6, vcc
        s_waitcnt lgkmcnt(0)
        """)
        self.srd(32, 4, 2048 * 1280)
        self.srd(36, 12, 1280)
        self.srd(52, 22, 256)
        for q in range(5):
            e(f"buffer_load_dwordx4 v[{20+4*q}:{23+4*q}], v2, s[36:39], 0 offen offset:{256*q}")
        e("s_mov_b32 s56, 0")
        for n in range(5):
            for q in range(5):
                b = 40 + 20*n + 4*q
                if n < 4:
                    e(f"buffer_load_dwordx4 v[{b}:{b+3}], v5, s[32:35], s56 offen offset:{256*q}")
                else:
                    e(f"buffer_load_dwordx4 v[{b}:{b+3}], v6, s[32:35], 0 offen offset:{256*q}")
            if n < 3: e(f"s_add_u32 s56, s56, {32*1280}")
        e("""
        s_mov_b32 s57, 0x3f803f80
        v_mov_b32 v8, 0
        v_mov_b32 v16, 0
        v_mov_b32 v17, 0
        s_waitcnt vmcnt(25)
        """)
        for i in range(20):
            e(f"v_dot2c_f32_bf16 v8, s57, v{20+i}")
        self.row_red("v_add_f32", 8)
        for n in range(5):
            e("v_mov_b32 v9, 0")
            e("v_mov_b32 v10, 0")
            e("v_mov_b32 v11, 0")
            for q in range(5):
                e(f"s_waitcnt vmcnt({24 - 5*n - q})")
                for i in range(4):
                    r = 40 + 20*n + 4*q + i
                    e(f"v_dot2c_f32_bf16 v9, s57, v{r}")
                    e(f"v_dot2c_f32_bf16 v10, v{r}, v{r}")
                    e(f"v_dot2c_f32_bf16 v11, v{20+4*q+i}, v{r}")
            for k in (8, 4, 2, 1):
                for v in (9, 10, 11):
                    e(f"v_add_f32_dpp v{v}, v{v}, v{v} row_ror:{k} row_mask:0xf bank_mask:0xf")
            self.ln_scalars(9, 10, 12, 13, 14)
            e(f"""
            v_rcp_f32 v13, v13
            v_fma_f32 v11, -v12, v8, v11
            v_mul_f32 v11, v11, v13
            v_ashrrev_i32 v12, 31, v11
            v_or_b32 v12, 0x80000000, v12
            v_xor_b32 v11, v11, v12
            v_and_b32 v11, 0xfffff800, v11
            v_add_u32 v12, {32*n}, v4
            v_sub_u32 v13, 2047, v12
            v_or_b32 v11, v11, v13
            v_max_u32 v11, 1, v11
            v_cmp_gt_u32 vcc, 2048, v12
            v_cndmask_b32 v11, 0, v11, vcc
            """)
            if n == 4:
                e(f"v_cmp_gt_u32 vcc, {147-128}, v3")
                e("v_cndmask_b32 v11, 0, v11, vcc")
            e("""
            v_min_u32 v12, v16, v11
            v_max_u32 v16, v16, v11
            v_max_u32 v17, v17, v12
            """)
        e("""
        v_lshlrev_b32 v2, 3, v3
        ds_write_b64 v2, v[16:17]
        s_waitcnt lgkmcnt(0)
        s_barrier
        s_cmp_eq_u32 s26, 0
        s_cbranch_scc0 L_fin
        v_lshlrev_b32 v2, 2, v0
        ds_read_b32 v4, v2
        s_waitcnt lgkmcnt(0)
        """)
        self.top2(4, 6, 56, 57, 58)
        e("""
        v_mov_b32 v4, s56
        v_mov_b32 v5, s57
        s_lshl_b32 s58, s29, 3
        v_mov_b32 v6, s58
        s_mov_b64 exec, 1
        buffer_store_dwordx2 v[4:5], v6, s[52:55], 0 offen sc1
        s_branch L_fin
        """)

    def ffn(self):
        e = self.e
        XN = 81920; H = XN + 4096; SIG = XN + 4608
        e(f"""
        L_ffn:
        s_cmp_ge_u32 s28, 27
        s_cbranch_scc1 L_end
        v_lshrrev_b32 v2, 3, v0
        v_and_b32 v3, 7, v0
        v_bfe_u32 v4, v0, 4, 1
        s_and_b32 s56, s26, 1
        s_lshl_b32 s56, s56, 1
        v_or_b32 v4, s56, v4
        v_xor_b32 v4, v4, v3
        v_lshlrev_b32 v4, 4, v4
        v_mul_u32_u24 v10, 3456, v2
        v_add_u32 v10, v10, v4
        v_xor_b32 v4, 64, v4
        v_mul_u32_u24 v11, 3456, v2
        v_add_u32 v11, v11, v4
        s_mul_i32 s57, s26, {8*3456}
        s_lshl_b32 s58, s28, 7
        s_add_u32 s57, s57, s58
        s_lshl_b32 s56, s26, 10
        s_waitcnt lgkmcnt(0)
        """)
        self.srd(32, 14, 640 * 3456)
        self.srd(36, 16, 640 * 3456)
        for reg in range(2):
            for n in range(5):
                e(f"s_add_u32 m0, s56, {reg*81920 + n*8192}")
                e("s_nop 0")
                e("buffer_load_dwordx4 v10, s[32:35], s57 offen nt lds")
                e(f"s_add_u32 m0, s56, {reg*81920 + 40960 + n*8192}")
                e("s_nop 0")
                e("buffer_load_dwordx4 v11, s[36:39], s57 offen nt lds")
                e(f"s_add_u32 s57, s57, {64*3456}")
        self.srd(40, 18, 1728 * 1280)
        self.srd(44, 24, WS_BYTES)
        self.srd(48, 4, 2048 * 1280)
        self.srd(52, 22, 256)
        e(f"""
        v_lshrrev_b32 v21, 4, v0
        v_and_b32 v20, 15, v0
        v_bfe_u32 v2, v0, 2, 2
        v_lshl_add_u32 v3, v21, 3, v2
        v_bfe_u32 v5, v0, 1, 1
        v_lshrrev_b32 v6, 1, v2
        v_and_b32 v7, 1, v21
        v_lshl_or_b32 v6, v7, 1, v6
        v_lshl_or_b32 v6, v5, 2, v6
        v_xor_b32 v6, s26, v6
        v_lshlrev_b32 v6, 4, v6
        v_lshl_add_u32 v6, v3, 7, v6
        v_and_b32 v8, 1, v0
        v_lshl_add_u32 v6, v8, 3, v6
        v_mul_u32_u24 v8, 40960, v5
        v_add_u32 v12, v6, v8
        v_add_u32 v13, 81920, v12
        v_lshl_or_b32 v6, v7, 2, v2
        v_xor_b32 v6, s26, v6
        v_lshlrev_b32 v6, 5, v6
        v_lshl_add_u32 v6, v3, 8, v6
        v_and_b32 v8, 3, v0
        v_lshl_add_u32 v14, v8, 3, v6
        v_add_u32 v15, 65536, v14
        s_and_b32 s58, s26, 2
        s_lshl_b32 s58, s58, 1
        v_or_b32 v6, s58, v21
        v_lshlrev_b32 v6, 1, v6
        v_xor_b32 v6, v6, v20
        v_lshlrev_b32 v6, 4, v6
        v_mul_u32_u24 v16, 1280, v21
        v_add_u32 v16, v16, v6
        s_waitcnt vmcnt(10)
        s_barrier
        """)
        WG = 40
        def frd(reg):
            for k in range(10):
                for u in range(2):
                    b = WG + 40*reg + 4*k + 2*u
                    e(f"ds_read_b64_tr_b16 v[{b}:{b+1}], v{12+reg} offset:{k*4096 + u*512}")
                if k == 5: e("s_waitcnt lgkmcnt(4)")
            e("s_waitcnt lgkmcnt(0)")
        frd(0)
        e("s_barrier")
        self.st(1)
        e(f"""
        s_cmp_ge_u32 s26, 4
        s_cbranch_scc0 L_f_nod
        s_sub_u32 s56, s26, 4
        s_mul_i32 s57, s28, 64
        s_lshl_b32 s58, s56, 2
        s_add_u32 s57, s57, s58
        s_mul_i32 s57, s57, 1280
        s_lshl_b32 s56, s56, 10
        """)
        for n in range(4):
            for seg in range(5):
                e(f"s_add_u32 m0, s56, {seg*16384 + n*4096 - seg*256}")
                e("s_nop 0")
                off = f" offset:{seg*256}" if seg else ""
                e(f"buffer_load_dwordx4 v16, s[40:43], s57 offen{off} nt lds")
            e(f"s_add_u32 s57, s57, {16*1280}")
        e("""
        s_waitcnt vmcnt(20)
        s_branch L_f_d
        L_f_nod:
        s_waitcnt vmcnt(0)
        L_f_d:
        s_barrier
        """)
        frd(1)
        e("s_barrier")
        self.st(2)
        e("s_cmp_ge_u32 s26, 2")
        e("s_cbranch_scc1 L_f_x")
        self.poll_keys("f", 4, 5, 6, 56, 57, 58)
        self.st(3)
        e(f"""
        s_cmp_eq_u32 s26, 0
        s_cselect_b32 s56, s56, s57
        s_and_b32 s57, s56, 0x7ff
        s_sub_u32 s57, 2047, s57
        s_mul_i32 s57, s57, 1280
        v_lshlrev_b32 v5, 2, v0
        """)
        for q in range(5):
            e(f"buffer_load_dword v{24+q}, v5, s[48:51], s57 offen offset:{256*q}")
        e(f"""
        s_and_b32 s56, s56, 0xfffff800
        s_or_b32 s56, s56, 0x400
        s_ashr_i32 s58, s56, 31
        s_not_b32 s58, s58
        s_or_b32 s58, s58, 0x80000000
        s_xor_b32 s56, s56, s58
        v_mov_b32 v6, s56
        """)
        self.rbf(6, 6)
        e(f"""
        v_mul_f32 v6, 0xbfb8aa3b, v6
        v_exp_f32 v6, v6
        v_add_f32 v6, 1.0, v6
        v_rcp_f32 v6, v6
        """)
        self.rbf(6, 6)
        e(f"""
        s_lshl_b32 s58, s26, 2
        s_add_u32 s58, s58, {SIG}
        v_mov_b32 v7, s58
        ds_write_b32 v7, v6
        s_mov_b32 s59, 0x3f803f80
        v_mov_b32 v9, 0
        v_mov_b32 v10, 0
        s_waitcnt vmcnt(0)
        """)
        for q in range(5):
            e(f"v_dot2c_f32_bf16 v9, s59, v{24+q}")
            e(f"v_dot2c_f32_bf16 v10, v{24+q}, v{24+q}")
        for k in (8, 4, 2, 1):
            for v in (9, 10):
                e(f"v_add_f32_dpp v{v}, v{v}, v{v} row_ror:{k} row_mask:0xf bank_mask:0xf")
        e("""
        v_permlane32_swap_b32 v9, v10
        v_add_f32 v9, v9, v10
        v_mov_b32 v10, v9
        v_permlane16_swap_b32 v9, v10
        v_add_f32 v9, v9, v10
        v_mov_b32 v10, v9
        v_permlane32_swap_b32 v9, v10
        """)
        self.ln_scalars(9, 10, 17, 18, 19)
        e("v_rcp_f32 v18, v18")
        e("s_mul_i32 s58, s26, 1280")
        e(f"s_add_u32 s58, s58, {XN}")
        e("v_add_u32 v5, s58, v5")
        for q in range(5):
            e(f"""
            v_lshlrev_b32 v30, 16, v{24+q}
            v_and_b32 v31, 0xffff0000, v{24+q}
            v_sub_f32 v30, v30, v17
            v_sub_f32 v31, v31, v17
            v_cvt_pk_bf16_f32 v31, v30, v31
            v_lshlrev_b32 v30, 16, v31
            v_and_b32 v31, 0xffff0000, v31
            v_mul_f32 v30, v30, v18
            v_mul_f32 v31, v31, v18
            v_cvt_pk_bf16_f32 v{32+q}, v30, v31
            ds_write_b32 v5, v{32+q} offset:{256*q}
            """)
        e(f"""
        L_f_x:
        v_and_b32 v2, 1, v0
        v_mul_u32_u24 v3, 1280, v2
        v_lshl_add_u32 v3, v21, 4, v3
        v_add_u32 v3, {XN}, v3
        v_lshlrev_b32 v4, 7, v2
        v_lshl_add_u32 v4, v21, 4, v4
        v_add_u32 v4, {H}, v4
        v_lshlrev_b32 v5, 2, v2
        v_add_u32 v5, {SIG}, v5
        s_waitcnt lgkmcnt(0)
        s_barrier
        """)
        self.st(4)
        XB = 120
        for k in range(20):
            e(f"ds_read_b128 v[{XB+4*k}:{XB+4*k+3}], v3 offset:{64*k}")
            if k >= 8:
                kk = k - 8
                e("s_waitcnt lgkmcnt(8)")
                e(f"v_mfma_f32_16x16x32_bf16 v[24:27], v[{WG+4*kk}:{WG+4*kk+3}], v[{XB+4*kk}:{XB+4*kk+3}], {'0' if kk == 0 else 'v[24:27]'}")
        for kk in range(12, 20):
            e(f"s_waitcnt lgkmcnt({19-kk})")
            e(f"v_mfma_f32_16x16x32_bf16 v[24:27], v[{WG+4*kk}:{WG+4*kk+3}], v[{XB+4*kk}:{XB+4*kk+3}], v[24:27]")
        e("ds_read_b32 v22, v5")
        for i in range(4):
            self.rbf(24+i, 24+i)
        for i in range(4):
            e(f"v_mov_b32 v{28+i}, v{24+i}")
        for i in range(4):
            e(f"v_permlane32_swap_b32 v{24+i}, v{28+i}")
        for i in range(4):
            e(f"v_mul_f32 v{32+i}, 0xbfb8aa3b, v{24+i}")
        for i in range(4):
            e(f"v_exp_f32 v{32+i}, v{32+i}")
        for i in range(4):
            e(f"v_add_f32 v{32+i}, 1.0, v{32+i}")
        for i in range(4):
            e(f"v_rcp_f32 v{32+i}, v{32+i}")
        for i in range(4):
            e(f"v_mul_f32 v{24+i}, v{24+i}, v{32+i}")
        for i in range(4):
            self.rbf(24+i, 24+i)
        for i in range(4):
            e(f"v_mul_f32 v{24+i}, v{24+i}, v{28+i}")
        e(f"""
        v_cvt_pk_bf16_f32 v24, v24, v25
        v_cvt_pk_bf16_f32 v25, v26, v27
        v_lshlrev_b32 v6, 7, v2
        v_and_b32 v7, 1, v21
        v_lshl_add_u32 v6, v7, 3, v6
        s_lshl_b32 s58, s26, 4
        s_add_u32 s58, s58, {H}
        v_add_u32 v6, s58, v6
        ds_write_b64 v6, v[24:25]
        s_waitcnt vmcnt(0) lgkmcnt(0)
        s_barrier
        """)
        self.st(5)
        e("ds_read_b128 v[24:27], v4")
        e("ds_read_b128 v[28:31], v4 offset:64")
        for seg in range(5):
            for k in range(2):
                for u in range(2):
                    b = WG + 8*seg + 4*k + 2*u
                    a, off = (14, seg*16384) if seg < 4 else (15, 0)
                    e(f"ds_read_b64_tr_b16 v[{b}:{b+1}], v{a} offset:{off + k*8192 + u*1024}")
            if seg == 2: e("s_waitcnt lgkmcnt(4)")
        e(f"""
        v_mul_u32_u24 v6, 2560, v20
        v_lshl_add_u32 v6, v21, 4, v6
        v_mov_b32 v7, {OOB}
        v_cmp_gt_u32 vcc, 2, v20
        v_cndmask_b32 v6, v7, v6, vcc
        s_mul_i32 s58, s28, 5120
        s_lshl_b32 s59, s26, 6
        s_add_u32 s58, s58, s59
        s_add_u32 s58, s58, {YP_OFF}
        s_waitcnt lgkmcnt(0)
        """)
        for k in range(2):
            for seg in range(5):
                d = XB + 4*seg; b = WG + 8*seg + 4*k
                e(f"v_mfma_f32_16x16x32_bf16 v[{d}:{d+3}], v[{b}:{b+3}], v[{24+4*k}:{27+4*k}], {'0' if k == 0 else f'v[{d}:{d+3}]'}")
        for seg in range(5):
            d = XB + 4*seg
            for i in range(4):
                e(f"v_mul_f32 v{d+i}, v{d+i}, v22")
            e(f"buffer_store_dwordx4 v[{d}:{d+3}], v6, s[44:47], s58 offen offset:{seg*512} sc1")
        e(f"""
        s_waitcnt vmcnt(0)
        s_barrier
        s_cmp_eq_u32 s26, 0
        s_cbranch_scc0 L_fin
        v_mov_b32 v4, 1
        v_mov_b32 v5, {DBG_FFN}
        s_mov_b64 exec, 1
        buffer_atomic_add v4, v5, s[52:55], 0 offen sc1
        """)


if __name__ == "__main__":
    import argparse
    ap = argparse.ArgumentParser()
    ap.add_argument("-o", default=f"cdna_kernels/{NAME}.s")
    ap.add_argument("--stamp", action="store_true")
    ap.add_argument("--remote", action="store_true")
    ap.add_argument("--fx", type=int, default=7)
    ap.add_argument("--cx", type=int, default=11)
    a = ap.parse_args()
    open(a.o, "w").write(G(FX=a.fx, stamp=a.stamp, force_remote=a.remote, cx=a.cx).gen())
```

```python
import sys
from hz import pad

NAME = "parallel_sum__sliding_local_dilated__moe_arch_mod__prompt"

HDR = """; Kernarg layout for this problem (88 bytes, ptrs only, base s[0:1]):
; @launch grid=(256,1,1) block=(512,1,1) lds=163840
"""

SLOT = 38912
XOFF = 24576
QD, KD, VD = 0, 14336, 28672
OSCR = 43008
XRES = SLOT + XOFF
WO = 2 * SLOT
MISC = 159744
NEGM, RSTD, INFO, YBUF = MISC, MISC + 512, MISC + 1024, MISC + 1280
SX_OFF, OX_OFF, FL_OFF, YP_OFF = 0, 0x180000, 0x480000, 0x4C0000
WS_BYTES = YP_OFF + 27 * 5120
STAMP_OFF = 0x800000
OOB = 0x7FFF0000
DBG_GRP, DBG_FFN = 128, 212
SPIN = 40000
BIG = 0xF149F2CA


def lanemask(fn):
    m = 0
    for l in range(64):
        if fn(l): m |= 1 << l
    return m & 0xFFFFFFFF, m >> 32


class G:
    def __init__(self, FX=7, stamp=False, force_remote=False, cx=11, diag_hold=0):
        self.l = []
        self.diag_hold = diag_hold
        self.FX = FX; self.stamp = stamp; self.force_remote = force_remote; self.cx = cx
        self.nst = 0

    def e(self, s):
        for x in s.strip().split("\n"):
            self.l.append(x.strip())

    def srd(self, d, b, nbytes, shift=0):
        e = self.e
        if shift:
            e(f"s_sub_u32 s{d}, s{b}, {shift}")
            e(f"s_subb_u32 s{d+1}, s{b+1}, 0")
        else:
            e(f"s_mov_b32 s{d}, s{b}")
            e(f"s_mov_b32 s{d+1}, s{b+1}")
        e(f"s_mov_b32 s{d+2}, {nbytes + shift}")
        e(f"s_mov_b32 s{d+3}, 0x00020000")

    def st(self, i):
        if self.stamp:
            self.e(f"s_memrealtime s[{82+2*i}:{83+2*i}]")

    def smask(self, d, fn):
        lo, hi = lanemask(fn)
        self.e(f"s_mov_b32 s{d}, {lo:#x}")
        self.e(f"s_mov_b32 s{d+1}, {hi:#x}")

    def rbf(self, d, s):
        self.e(f"v_cvt_pk_bf16_f32 v{d}, v{s}, v{s}")
        self.e(f"v_and_b32 v{d}, 0xffff0000, v{d}")

    def ln_scalars(self, s1, s2, mean, sd, t):
        e = self.e
        e(f"v_mul_f32 v{s1}, 0x3acccccd, v{s1}")
        e(f"v_mul_f32 v{s2}, 0x3acccccd, v{s2}")
        e(f"v_fma_f32 v{t}, -v{s1}, v{s1}, v{s2}")
        e(f"v_max_f32 v{t}, 0, v{t}")
        self.rbf(t, t)
        e(f"v_add_f32 v{t}, 0x3727c5ac, v{t}")
        self.rbf(t, t)
        e(f"v_sqrt_f32 v{t}, v{t}")
        self.rbf(mean, s1)
        self.rbf(sd, t)

    def row_red(self, op, v):
        for k in (8, 4, 2, 1):
            self.e(f"{op}_dpp v{v}, v{v}, v{v} row_ror:{k} row_mask:0xf bank_mask:0xf")

    def wave_umax(self, v, t, sd, st):
        e = self.e
        e(f"v_mov_b32 v{t}, v{v}")
        self.row_red("v_max_u32", t)
        e(f"v_readlane_b32 s{sd}, v{t}, 0")
        e(f"v_readlane_b32 s{st}, v{t}, 16")
        e(f"v_readlane_b32 s{st+1}, v{t}, 32")
        e(f"v_readlane_b32 s{st+2}, v{t}, 48")
        e(f"s_max_u32 s{sd}, s{sd}, s{st}")
        e(f"s_max_u32 s{st+1}, s{st+1}, s{st+2}")
        e(f"s_max_u32 s{sd}, s{sd}, s{st+1}")

    def top2(self, v, t, k1, k2, st):
        e = self.e
        self.wave_umax(v, t, k1, st)
        e(f"v_cmp_ne_u32 vcc, s{k1}, v{v}")
        e(f"v_cndmask_b32 v{v}, 0, v{v}, vcc")
        self.wave_umax(v, t, k2, st)

    def poll_keys(self, tag, vk, va, t, k1, k2, st):
        e = self.e
        e(f"v_lshlrev_b32 v{va}, 2, v0")
        e(f"v_cmp_gt_u32 vcc, 28, v0")
        e(f"v_mov_b32 v{t}, {OOB}")
        e(f"v_cndmask_b32 v{va}, v{t}, v{va}, vcc")
        e(f"s_mov_b32 s{st}, 0")
        e(f"L_pk_{tag}:")
        e(f"buffer_load_dword v{vk}, v{va}, s[52:55], 0 offen sc1")
        e(f"s_add_u32 s{st}, s{st}, 1")
        e("s_waitcnt vmcnt(0)")
        e(f"v_cmp_ne_u32 vcc, 0, v{vk}")
        e(f"s_cmp_ge_u32 s{st}, {SPIN}")
        e(f"s_cbranch_scc1 L_pkd_{tag}")
        e("s_cmp_eq_u32 vcc_lo, 0x0fffffff")
        e(f"s_cbranch_scc0 L_pk_{tag}")
        e(f"L_pkd_{tag}:")
        self.top2(vk, t, k1, k2, st)

    def loader_stage(self):
        e = self.e
        e("s_lshl_b32 s58, s31, 7")
        e("s_add_u32 s58, s58, s57")
        e(f"s_add_u32 m0, s56, {XOFF}")
        e("s_mov_b64 exec, s[60:61]")
        e("buffer_load_dwordx4 v10, s[32:35], s58 offen lds")
        e("s_mov_b64 exec, -1")
        for n in range(1, 7):
            e("s_add_u32 m0, m0, 2048")
            e(f"s_add_u32 s58, s58, {16*1280}")
            e("buffer_load_dwordx4 v10, s[32:35], s58 offen lds")
        e("s_mov_b32 m0, s56")
        e(f"s_mul_i32 s59, s31, {64*3840}")
        for n in range(4):
            for a in range(3):
                off = f" offset:{a*1280}" if a else ""
                e(f"buffer_load_dwordx4 v11, s[36:39], s59 offen{off} lds")
                if a < 2:
                    e(f"s_add_u32 m0, m0, {8192-1280}")
                elif n < 3:
                    e(f"s_sub_u32 m0, m0, {2*(8192-1280) - 2048}")
                    e(f"s_add_u32 s59, s59, {16*3840}")
        e("s_add_u32 s31, s31, 1")
        e("s_cmp_eq_u32 s31, 10")
        e("s_cselect_b32 s31, 0, s31")
        e(f"s_add_u32 s56, s56, {SLOT}")
        e(f"s_cmp_ge_u32 s56, {4*SLOT}")
        e(f"s_cselect_b32 s58, {4*SLOT}, 0")
        e("s_sub_u32 s56, s56, s58")

    def wo_loads(self, n):
        e = self.e
        for _ in range(n):
            e("buffer_load_dwordx4 v12, s[40:43], s59 offen lds")
            e("s_add_u32 m0, m0, 2048")
            e(f"s_add_u32 s59, s59, {16*1280}")
            e(f"s_cmp_eq_u32 s59, {640*1280}")
            e("s_cselect_b32 s59, 0, s59")

    def xstore(self, tag, text):
        e = self.e
        e("s_cmp_eq_u32 s78, 1")
        e(f"s_cbranch_scc0 L_xr_{tag}")
        for t in text: e(t)
        e(f"s_branch L_xd_{tag}")
        e(f"L_xr_{tag}:")
        for t in text: e(t + " sc1")
        e(f"L_xd_{tag}:")

    def gen(self):
        e = self.e
        kn = NAME + "_kernel"
        e(f"""
        .amdgcn_target "amdgcn-amd-amdhsa--gfx950"
        .text
        .globl {kn}
        .p2align 8
        .type {kn},@function
        {kn}:
        """)
        self.st(0)
        if self.diag_hold: e("s_memrealtime s[82:83]")
        e(f"""
        s_load_dwordx16 s[4:19], s[0:1], 0
        s_load_dwordx4 s[20:23], s[0:1], 64
        s_load_dwordx2 s[24:25], s[0:1], 80
        s_cmp_ge_u32 s2, 256
        s_cbranch_scc1 L_end
        v_lshrrev_b32 v1, 6, v0
        v_and_b32 v0, 63, v0
        v_readfirstlane_b32 s26, v1
        s_add_u32 s27, s2, {7 - self.FX}
        s_and_b32 s27, s27, 7
        s_lshr_b32 s28, s2, 3
        s_cmp_eq_u32 s27, 7
        s_cbranch_scc1 L_ffn
        s_cmp_ge_u32 s28, 30
        s_cbranch_scc1 L_router
        s_mul_i32 s56, s28, 26
        s_lshr_b32 s56, s56, 8
        s_mul_i32 s30, s56, 10
        s_sub_u32 s30, s28, s30
        s_mul_i32 s29, s27, 3
        s_add_u32 s29, s29, s56
        s_mul_i32 s31, s27, {self.cx}
        s_lshr_b32 s31, s31, 3
        s_add_u32 s31, s31, s30
        s_cmp_ge_u32 s31, 10
        s_cselect_b32 s56, 10, 0
        s_sub_u32 s31, s31, s56
        s_sub_u32 s76, s31, 1
        s_cmp_eq_u32 s31, 0
        s_cselect_b32 s76, 9, s76
        s_mov_b32 s3, 0
        s_cmp_lt_u32 s26, 4
        s_cbranch_scc1 L_const
        s_cmp_ge_u32 s26, 6
        s_cbranch_scc1 L_st_pre
        """)
        e(f"""
        s_mov_b32 s3, 1
        s_sub_u32 s62, s26, 4
        v_lshrrev_b32 v2, 3, v0
        v_and_b32 v3, 7, v0
        v_lshrrev_b32 v4, 4, v0
        s_lshl_b32 s56, s62, 2
        v_add_u32 v5, s56, v4
        v_xor_b32 v5, v5, v3
        v_lshlrev_b32 v5, 4, v5
        v_mul_u32_u24 v10, 1280, v2
        v_add_u32 v10, v10, v5
        v_and_b32 v5, 1, v4
        v_lshlrev_b32 v5, 1, v5
        v_or_b32 v5, s56, v5
        v_xor_b32 v5, v5, v3
        v_lshlrev_b32 v5, 4, v5
        v_mul_u32_u24 v11, 3840, v2
        v_add_u32 v11, v11, v5
        s_mul_i32 s57, s62, {8*3840}
        s_lshl_b32 s58, s30, 7
        s_add_u32 s57, s57, s58
        v_add_u32 v11, s57, v11
        s_mul_i32 s57, s29, 97
        s_lshl_b32 s58, s62, 3
        s_add_u32 s57, s57, s58
        s_mul_i32 s57, s57, 1280
        s_lshl_b32 s56, s62, 10
        s_cmp_eq_u32 s62, 0
        s_cselect_b32 s60, 0xffffff00, -1
        s_mov_b32 s61, -1
        s_waitcnt lgkmcnt(0)
        """)
        self.srd(32, 4, 2048 * 1280, shift=1280)
        self.srd(36, 6, 640 * 3840)
        self.loader_stage()
        self.srd(40, 8, 640 * 1280)
        e(f"""
        v_lshlrev_b32 v5, 1, v4
        v_xor_b32 v5, v5, v3
        v_lshlrev_b32 v5, 4, v5
        v_mul_u32_u24 v12, 1280, v2
        v_add_u32 v12, v12, v5
        s_mul_i32 s58, s62, {8*1280}
        s_lshl_b32 s59, s76, 7
        s_add_u32 s58, s58, s59
        v_add_u32 v12, s58, v12
        s_branch L_const
        """)
        e(f"""
        L_st_pre:
        s_mov_b32 s3, 2
        v_mov_b32 v4, 0x3f803f80
        v_mov_b32 v5, v4
        v_mov_b32 v6, v4
        v_mov_b32 v7, v4
        v_lshrrev_b32 v2, 3, v0
        v_and_b32 v2, 3, v2
        v_mul_u32_u24 v2, {SLOT}, v2
        v_and_b32 v3, 7, v0
        v_lshlrev_b32 v3, 4, v3
        v_add_u32 v2, v2, v3
        ds_write_b128 v2, v[4:7] offset:{XOFF}
        s_waitcnt lgkmcnt(0)
        """)
        self.srd(44, 24, WS_BYTES)
        e("s_cmp_eq_u32 s26, 7")
        e("s_cbranch_scc0 L_const")
        self.prefill("")
        self.consts()
        e("""
        s_cmp_eq_u32 s3, 0
        s_cbranch_scc1 L_mf
        s_cmp_eq_u32 s3, 2
        s_cbranch_scc1 L_st
        """)
        e("s_mov_b32 s63, 1")
        e("L_ld_loop:")
        self.loader_stage()
        e("""
        s_add_u32 s63, s63, 1
        s_waitcnt vmcnt(19)
        s_barrier
        s_cmp_lt_u32 s63, 10
        s_cbranch_scc1 L_ld_loop
        """)
        e("s_lshl_b32 s58, s62, 10")
        e(f"s_add_u32 m0, s58, {WO}")
        e(f"s_mul_i32 s59, s30, {64*1280}")
        self.wo_loads(19)
        e("s_waitcnt vmcnt(19)")
        e("s_barrier")
        self.st(1)
        self.wo_loads(12)
        e("s_barrier")
        self.wo_loads(9)
        e("s_branch L_pre_att")
        self.stats_role()
        self.mfma_role()
        self.attention()
        self.wave7_tail()
        self.router()
        self.ffn()
        e("L_fin:")
        if self.diag_hold:
            e("L_hold:")
            e("s_memrealtime s[84:85]")
            e("s_waitcnt lgkmcnt(0)")
            e("s_sub_u32 s86, s84, s82")
            e(f"s_cmp_lt_u32 s86, {self.diag_hold}")
            e("s_cbranch_scc1 L_hold")
        if self.stamp:
            self.st(9)
            e("s_waitcnt lgkmcnt(0)")
            self.srd(44, 24, 1 << 24)
            e("s_lshl_b32 s56, s2, 3")
            e("s_add_u32 s56, s56, s26")
            e("s_lshl_b32 s56, s56, 6")
            e(f"s_add_u32 s56, s56, {STAMP_OFF}")
            e("s_mov_b64 exec, -1")
            for i in range(10):
                e(f"v_mov_b32 v{4+i}, s{82+2*i}")
            e("v_mov_b32 v14, 0")
            e("v_mov_b32 v15, 0")
            e("v_mov_b32 v2, 0")
            e("s_mov_b64 exec, 1")
            for i in range(3):
                e(f"buffer_store_dwordx4 v[{4+4*i}:{7+4*i}], v2, s[44:47], s56 offen offset:{16*i}")
        e("L_end:")
        e("s_endpgm")
        body = pad(self.l)
        tail = f""".section .rodata,"a"
.p2align 6
.amdhsa_kernel {kn}
  .amdhsa_next_free_vgpr 256
  .amdhsa_next_free_sgpr 102
  .amdhsa_accum_offset 256
  .amdhsa_group_segment_fixed_size 0
  .amdhsa_kernarg_size 88
  .amdhsa_user_sgpr_count 2
  .amdhsa_user_sgpr_kernarg_segment_ptr 1
  .amdhsa_system_sgpr_workgroup_id_x 1
  .amdhsa_float_denorm_mode_32 3
.end_amdhsa_kernel
"""
        return HDR + "\n".join(body) + "\n" + tail

    def prefill(self, aux):
        e = self.e
        e(f"""
        v_mov_b32 v4, -1
        v_mov_b32 v5, -1
        v_mov_b32 v6, -1
        v_mov_b32 v7, -1
        v_lshlrev_b32 v2, 4, v0
        s_mul_i32 s58, s29, 10
        s_add_u32 s58, s58, s30
        s_mul_i32 s58, s58, 7168
        s_add_u32 s59, s58, 4096
        """)
        for i in range(7):
            e(f"buffer_store_dwordx4 v[4:7], v2, s[44:47], s{58 + i//4} offen offset:{(i%4)*1024}{aux}")
        e(f"""
        v_lshlrev_b32 v2, 7, v0
        v_mov_b32 v3, {OOB}
        v_cmp_gt_u32 vcc, 7, v0
        v_cndmask_b32 v2, v3, v2, vcc
        v_mov_b32 v8, 0
        s_mul_i32 s58, s29, 896
        s_lshl_b32 s59, s30, 2
        s_add_u32 s58, s58, s59
        s_add_u32 s58, s58, {FL_OFF}
        buffer_store_dword v8, v2, s[44:47], s58 offen{aux}
        """)

    QA = 200; VA = 202; WA = 206; RQ = 210; RK = 211; BC = 216; BP = 220; SEL = 224; QM = 228; XA = 240; L8 = 244; L16 = 245

    def consts(self):
        e = self.e
        c = self
        e(f"""
        L_const:
        s_cmp_ge_u32 s30, 5
        s_cselect_b32 s77, 5, 0
        s_sub_u32 s77, s30, s77
        s_lshl_b32 s79, s26, 11
        v_and_b32 v20, 15, v0
        v_lshrrev_b32 v21, 4, v0
        v_lshrrev_b32 v22, 1, v20
        v_lshlrev_b32 v23, 7, v20
        v_add_u32 v23, s79, v23
        v_xor_b32 v24, v21, v22
        v_lshl_add_u32 v{c.QA}, v24, 4, v23
        v_xor_b32 v{c.QA+1}, 64, v{c.QA}
        v_lshrrev_b32 v24, 1, v21
        v_xor_b32 v24, v24, v22
        v_lshl_add_u32 v24, v24, 4, v23
        v_and_b32 v25, 1, v21
        v_lshl_add_u32 v{c.XA}, v25, 3, v24
        v_xor_b32 v{c.XA+1}, 32, v{c.XA}
        v_xor_b32 v{c.XA+2}, 64, v{c.XA}
        v_xor_b32 v{c.XA+3}, 0x60, v{c.XA}
        v_lshrrev_b32 v24, 2, v0
        v_and_b32 v25, 3, v0
        v_bfe_u32 v26, v24, 1, 2
        v_lshlrev_b32 v26, 5, v26
        v_lshl_add_u32 v26, v24, 7, v26
        v_lshl_add_u32 v27, v25, 3, v26
        v_add_u32 v{c.WA}, {WO}, v27
        v_lshrrev_b32 v28, 3, v24
        v_lshlrev_b32 v28, 4, v28
        v_xor_b32 v27, v27, v28
        v_add_u32 v{c.VA}, s79, v27
        """)
        for T in range(1, 4):
            e(f"v_xor_b32 v{c.WA+T}, {T*32}, v{c.WA}")
            e(f"v_xor_b32 v{c.VA+T}, {T*32}, v{c.VA}")
        e(f"""
        s_lshl_b32 s58, s26, 4
        v_add_u32 v24, s58, v20
        v_lshlrev_b32 v{c.RQ}, 2, v24
        v_and_b32 v24, 1, v20
        v_lshl_add_u32 v24, v21, 2, v24
        v_add_u32 v24, s58, v24
        v_lshlrev_b32 v{c.L8}, 3, v0
        v_lshlrev_b32 v{c.L16}, 4, v0
        v_mov_b32 v29, 0x0c0c0c0c
        v_mov_b32 v30, {BIG:#x}
        """)
        self.smask(66, lambda l: l & 1)
        for jx in range(2):
            self.smask(64, lambda l: 4*(l >> 4) + 2*jx + (l & 1) <= (l & 15))
            lo, hi = (0x0c0c0100, 0x01000c0c) if jx == 0 else (0x0c0c0302, 0x03020c0c)
            e(f"""
            v_add_u32 v25, {2*jx}, v24
            v_add_u32 v26, -16, v25
            v_cndmask_b32 v25, v26, v25, s[64:65]
            v_max_i32 v25, 0, v25
            v_lshlrev_b32 v{c.RK+jx}, 2, v25
            v_mov_b32 v26, {lo:#x}
            v_mov_b32 v27, {hi:#x}
            v_cndmask_b32 v26, v26, v27, s[66:67]
            v_cndmask_b32 v{c.SEL+2+jx}, v29, v26, s[64:65]
            v_cndmask_b32 v{c.SEL+jx}, v26, v29, s[64:65]
            """)
        e("s_cmp_eq_u32 s26, 0")
        for i in range(4):
            lo, hi = lanemask(lambda l: ((i ^ l) & 1) == 0 and 4*(l >> 4) + i <= (l & 15))
            if i == 0:
                e(f"s_mov_b32 s64, {lo:#x}")
                e(f"s_cselect_b32 s64, {lo & 0xffff0000:#x}, s64")
            else:
                e(f"s_mov_b32 s64, {lo:#x}")
            e(f"s_mov_b32 s65, {hi:#x}")
            e(f"v_cndmask_b32 v{c.BC+i}, v30, 0, s[64:65]")
            lo, hi = lanemask(lambda l: ((i ^ l) & 1) == 0 and 4*(l >> 4) + i > (l & 15))
            e(f"s_cselect_b32 s66, 0, {lo:#x}")
            e(f"s_cselect_b32 s67, 0, {hi:#x}")
            e(f"v_cndmask_b32 v{c.BP+i}, v30, 0, s[66:67]")
        e("v_lshlrev_b32 v24, 1, v21")
        e("v_add_u32 v24, s77, v24")
        for h in range(2):
            for u in range(2):
                e(f"v_add_u32 v25, {8*h+u}, v24")
                e("v_mul_u32_u24 v25, 52, v25")
                e("v_lshrrev_b32 v25, 8, v25")
                for k, (sg, hh) in enumerate(self.COMBOS):
                    if hh == h:
                        e(f"v_cmp_eq_u32 vcc, {sg}, v25")
                        e(f"v_cndmask_b32 v{c.QM+2*k+u}, 0, -1, vcc")
        e("v_add_u32 v24, s77, v21")
        for k, th in enumerate((5, 1, 6, 2, 7, 3)):
            e(f"v_cmp_le_u32 s[{64+2*k}:{65+2*k}], {th}, v24")
        e("s_waitcnt lgkmcnt(0)")
        self.srd(44, 24, WS_BYTES)
        self.srd(48, 20, 2048 * 1280, shift=1280)
        self.srd(52, 22, 256)

    COMBOS = [(0, 0), (3, 1), (1, 0), (1, 1), (2, 0), (2, 1)]

    def stats_role(self):
        e = self.e; c = self
        e(f"""
        L_st:
        s_sub_u32 s62, s26, 6
        s_lshl_b32 s58, s62, 13
        s_sub_u32 s58, s58, s79
        s_add_u32 s58, s58, {XOFF}
        v_add_u32 v2, s58, v{c.QA}
        v_add_u32 v3, s58, v{c.QA+1}
        s_mov_b32 s57, 0x3f803f80
        s_mov_b32 s63, 0
        s_mov_b32 s56, 0
        s_mov_b32 s60, {SLOT}
        """)
        for i in range(8):
            e(f"v_mov_b32 v{40+i}, 0")
        e(f"""
        s_getreg_b32 s58, hwreg(HW_REG_XCC_ID, 0, 3)
        s_add_u32 s58, s58, 24
        s_lshl_b32 s58, 1, s58
        s_lshl_b32 s59, 1, s30
        s_or_b32 s58, s58, s59
        v_mov_b32 v11, s58
        s_lshl_b32 s59, s29, 2
        s_add_u32 s59, s59, {DBG_GRP}
        v_mov_b32 v9, s59
        """)
        e("L_st_loop:")
        e("s_barrier")
        for h in range(2):
            for m in range(4):
                e(f"ds_read_b128 v[{48+16*h+4*m}:{51+16*h+4*m}], v{2+h} offset:{m*2048}")
        e(f"""
        s_cmp_eq_u32 s26, 7
        s_cbranch_scc0 L_st_a
        s_cmp_eq_u32 s63, 0
        s_cbranch_scc0 L_st_b
        s_waitcnt vmcnt(0)
        s_mov_b64 exec, 1
        buffer_atomic_or v11, v9, s[52:55], 0 offen sc1
        s_mov_b64 exec, -1
        L_st_b:
        s_cmp_eq_u32 s63, 8
        s_cbranch_scc0 L_st_a
        buffer_load_dword v10, v9, s[52:55], 0 offen sc1
        L_st_a:
        s_add_u32 s56, s56, 1
        s_cmp_eq_u32 s56, 4
        s_cselect_b32 s58, {(-3*SLOT) & 0xffffffff:#x}, s60
        s_cselect_b32 s56, 0, s56
        s_add_u32 s63, s63, 1
        """)
        for h in range(2):
            for m in range(4):
                e(f"s_waitcnt lgkmcnt({7 - 4*h - m})")
                for q in range(4):
                    r = 48 + 16*h + 4*m + q
                    e(f"v_dot2c_f32_bf16 v{40+m}, s57, v{r}")
                    e(f"v_dot2c_f32_bf16 v{44+m}, v{r}, v{r}")
        e("v_add_u32 v2, s58, v2")
        e("v_add_u32 v3, s58, v3")
        e("s_cmp_lt_u32 s63, 10")
        e("s_cbranch_scc1 L_st_loop")
        for b in (40, 44):
            e(f"v_permlane32_swap_b32 v{b}, v{b+2}")
            e(f"v_permlane32_swap_b32 v{b+1}, v{b+3}")
        for b in (40, 44):
            e(f"v_add_f32 v{b}, v{b}, v{b+2}")
            e(f"v_add_f32 v{b+1}, v{b+1}, v{b+3}")
        for b in (40, 44):
            e(f"v_permlane16_swap_b32 v{b}, v{b+1}")
        for b in (40, 44):
            e(f"v_add_f32 v{b}, v{b}, v{b+1}")
        self.ln_scalars(40, 44, 41, 42, 43)
        e(f"""
        v_rcp_f32 v42, v42
        v_sub_f32 v41, 0, v41
        s_lshl_b32 s58, s62, 8
        v_lshl_add_u32 v43, v0, 2, s58
        v_add_u32 v43, {NEGM}, v43
        ds_write_b32 v43, v41
        ds_write_b32 v43, v42 offset:{RSTD-NEGM}
        s_waitcnt lgkmcnt(0)
        s_barrier
        s_cmp_eq_u32 s26, 7
        s_cbranch_scc0 L_pre_att
        """)
        e(f"""
        s_mov_b32 s63, 0
        L_grp:
        s_waitcnt vmcnt(0)
        v_readfirstlane_b32 s58, v10
        s_and_b32 s59, s58, 0x3ff
        s_cmp_eq_u32 s59, 0x3ff
        s_cbranch_scc1 L_grp_ok
        s_add_u32 s63, s63, 1
        s_cmp_ge_u32 s63, {SPIN}
        s_cbranch_scc1 L_grp_ok
        buffer_load_dword v10, v9, s[52:55], 0 offen sc1
        s_branch L_grp
        L_grp_ok:
        s_lshr_b32 s59, s58, 24
        s_bcnt1_i32_b32 s78, s59
        """)
        if self.force_remote:
            e("s_mov_b32 s78, 2")
        e("""
        s_cmp_eq_u32 s78, 1
        s_cbranch_scc1 L_grp_done
        """)
        self.prefill(" sc1")
        e(f"""
        s_waitcnt vmcnt(0)
        s_add_u32 s58, s30, 10
        s_lshl_b32 s58, 1, s58
        v_mov_b32 v8, s58
        s_mov_b64 exec, 1
        buffer_atomic_or v8, v9, s[52:55], 0 offen sc1
        s_mov_b64 exec, -1
        s_mov_b32 s63, 0
        L_grp2:
        buffer_load_dword v10, v9, s[52:55], 0 offen sc1
        s_add_u32 s63, s63, 1
        s_waitcnt vmcnt(0)
        v_readfirstlane_b32 s58, v10
        s_cmp_ge_u32 s63, {SPIN}
        s_cbranch_scc1 L_grp_done
        s_and_b32 s59, s58, 0xffc00
        s_cmp_eq_u32 s59, 0xffc00
        s_cbranch_scc0 L_grp2
        L_grp_done:
        v_mov_b32 v8, s78
        v_mov_b32 v9, {INFO}
        ds_write_b32 v9, v8
        s_waitcnt lgkmcnt(0)
        s_barrier
        s_branch L_w7
        """)

    def mfma_role(self):
        e = self.e; c = self
        ACC = 32
        WF = 116
        XF = 140
        acc = lambda m, a: ACC + (m*3 + a)*4
        e(f"""
        L_mf:
        s_sub_u32 s58, {XOFF}, s79
        v_add_u32 v2, s58, v{c.QA}
        v_add_u32 v3, s58, v{c.QA+1}
        v_bfe_u32 v5, v0, 2, 2
        v_lshl_add_u32 v6, v21, 3, v5
        v_lshlrev_b32 v6, 7, v6
        v_lshrrev_b32 v5, 1, v5
        v_and_b32 v7, 1, v21
        v_lshl_add_u32 v5, v7, 1, v5
        v_xor_b32 v5, s26, v5
        v_lshl_add_u32 v6, v5, 5, v6
        v_and_b32 v5, 3, v0
        v_lshl_add_u32 v4, v5, 3, v6
        s_lshl_b32 s58, s26, 5
        v_subrev_u32 v8, s79, v{c.XA}
        v_xor_b32 v8, s58, v8
        v_bfe_u32 v5, v20, 1, 2
        v_xor_b32 v5, s26, v5
        v_lshlrev_b32 v5, 5, v5
        v_lshl_add_u32 v5, v20, 7, v5
        v_lshrrev_b32 v6, 1, v21
        v_lshrrev_b32 v9, 3, v20
        v_xor_b32 v6, v6, v9
        v_lshl_add_u32 v5, v6, 4, v5
        v_lshl_add_u32 v9, v7, 3, v5
        v_lshlrev_b32 v10, 2, v20
        v_add_u32 v10, {NEGM}, v10
        s_mov_b32 s63, 0
        s_mov_b32 s56, 0
        s_mov_b32 s60, {SLOT}
        """)
        for i in range(84):
            e(f"v_mov_b32 v{ACC+i}, 0")
        def rd(h):
            r = []
            for a in range(3):
                for u in range(2):
                    b = WF + 12*h + 4*a + 2*u
                    r.append(f"ds_read_b64_tr_b16 v[{b}:{b+1}], v4 offset:{a*8192 + h*4096 + u*512}")
            for m in range(7):
                b = XF + 28*h + 4*m
                r.append(f"ds_read_b128 v[{b}:{b+3}], v{2+h} offset:{m*2048}")
            return r
        e("L_mf_loop:")
        e("s_barrier")
        for x in rd(0): e(x)
        e(f"""
        s_add_u32 s56, s56, 1
        s_cmp_eq_u32 s56, 4
        s_cselect_b32 s58, {(-3*SLOT) & 0xffffffff:#x}, s60
        s_cselect_b32 s56, 0, s56
        s_add_u32 s63, s63, 1
        """)
        r1 = rd(1); issued = 0
        for m in range(7):
            e(f"s_waitcnt lgkmcnt({6 - m + issued})")
            for a in range(3):
                e(f"v_mfma_f32_16x16x32_bf16 v[{acc(m,a)}:{acc(m,a)+3}], v[{WF+4*a}:{WF+4*a+3}], v[{XF+4*m}:{XF+4*m+3}], v[{acc(m,a)}:{acc(m,a)+3}]")
                if a < 2 and issued < 13:
                    e(r1[issued]); issued += 1
        e("v_add_u32 v2, s58, v2")
        e("v_add_u32 v3, s58, v3")
        e("v_add_u32 v4, s58, v4")
        for m in range(7):
            e(f"s_waitcnt lgkmcnt({6 - m})")
            for a in range(3):
                e(f"v_mfma_f32_16x16x32_bf16 v[{acc(m,a)}:{acc(m,a)+3}], v[{WF+12+4*a}:{WF+12+4*a+3}], v[{XF+28+4*m}:{XF+28+4*m+3}], v[{acc(m,a)}:{acc(m,a)+3}]")
        e("s_cmp_lt_u32 s63, 10")
        e("s_cbranch_scc1 L_mf_loop")
        self.st(1)
        CS = 116; NM = 128; PK = 140
        for a in range(3):
            for i in range(4):
                e(f"v_mov_b32_dpp v{CS+4*a+i}, v{acc(0,a)+i} row_newbcast:0 row_mask:0xf bank_mask:0xf")
        e("s_barrier")
        for m in range(7):
            e(f"ds_read_b32 v{NM+m}, v10 offset:{m*64}")
        k = 0
        for a in range(3):
            for m in range(7):
                if a == 0: e(f"s_waitcnt lgkmcnt({6})")
                nm = NM + m; p = nm & ~1
                sel = "op_sel:[0,1,0] op_sel_hi:[1,1,1]" if nm & 1 else "op_sel_hi:[1,0,1]"
                A = acc(m, a)
                for z in range(2):
                    e(f"v_pk_fma_f32 v[{A+2*z}:{A+2*z+1}], v[{CS+4*a+2*z}:{CS+4*a+2*z+1}], v[{p}:{p+1}], v[{A+2*z}:{A+2*z+1}] {sel}")
                d = PK + 2*(k % 8); k += 1
                e(f"v_cvt_pk_bf16_f32 v{d}, v{A}, v{A+1}")
                e(f"v_cvt_pk_bf16_f32 v{d+1}, v{A+2}, v{A+3}")
                e(f"ds_write_b64 v{9 if a == 2 else 8}, v[{d}:{d+1}] offset:{(QD, KD, VD)[a] + m*2048}")

    def attention(self):
        e = self.e; c = self
        Q = 32; KC = 40; KP = 48; V = 56
        QX = 72
        S = 96
        T_ = 128
        RMT = 136
        RQ, RK, CJ = 140, 141, 144
        P = 148
        TMP = 164
        A2 = 176
        XR = 192
        e(f"""
        L_pre_att:
        s_mul_i32 s58, s29, 10
        s_add_u32 s58, s58, s30
        s_mul_i32 s58, s58, 7168
        s_lshl_b32 s59, s26, 9
        s_add_u32 s58, s58, s59
        s_add_u32 s59, s58, 3584
        s_sub_u32 s60, s58, 3584
        s_add_u32 s61, s58, 7168
        s_cmp_eq_u32 s77, 0
        s_cselect_b32 s58, {OOB}, s58
        s_cselect_b32 s60, {OOB}, s60
        s_cmp_eq_u32 s77, 4
        s_cselect_b32 s59, {OOB}, s59
        s_cselect_b32 s61, {OOB}, s61
        v_mov_b32 v2, {INFO}
        v_add_u32 v3, {NEGM}, v{c.RQ}
        v_add_u32 v4, {RSTD}, v{c.RK}
        v_add_u32 v5, {RSTD}, v{c.RK+1}
        s_waitcnt lgkmcnt(0)
        s_barrier
        """)
        self.st(2)
        for h in range(2):
            e(f"ds_read_b128 v[{Q+4*h}:{Q+4*h+3}], v{c.QA+h} offset:{QD}")
        for h in range(2):
            e(f"ds_read_b128 v[{KC+4*h}:{KC+4*h+3}], v{c.QA+h} offset:{KD}")
            e(f"ds_read_b128 v[{KP+4*h}:{KP+4*h+3}], v{c.QA+h} offset:{KD-2048}")
        e(f"ds_read_b32 v6, v2")
        e(f"ds_read_b32 v{RQ}, v3 offset:{RSTD-NEGM}")
        e(f"ds_read_b32 v{RK}, v4")
        e(f"ds_read_b32 v{RK+1}, v5")
        e(f"ds_read_b32 v7, v3")
        e("s_waitcnt lgkmcnt(9)")
        def qmask(k):
            sg, h = self.COMBOS[k]
            for i in range(4):
                e(f"v_and_b32 v{QX+4*k+i}, v{Q+4*h+i}, v{c.QM+2*k+(i>>1)}")
        def smm(k, first):
            sg, h = self.COMBOS[k]
            for kb, z, bias in ((KC, 0, c.BC), (KP, 1, c.BP)):
                d = S + 8*sg + 4*z
                ci = bias if first else d
                e(f"v_mfma_f32_16x16x32_bf16 v[{d}:{d+3}], v[{kb+4*h}:{kb+4*h+3}], v[{QX+4*k}:{QX+4*k+3}], v[{ci}:{ci+3}]")
        def sel(sg):
            for jx in range(2):
                b = S + 8*sg + 2*jx
                e(f"v_max3_f32 v{T_+2*sg+jx}, v{b}, v{b+1}, v{b+4}")
            for jx in range(2):
                b = S + 8*sg + 2*jx
                e(f"v_max_f32 v{T_+2*sg+jx}, v{T_+2*sg+jx}, v{b+5}")
        qmask(0); qmask(1)
        e("s_waitcnt lgkmcnt(5)")
        smm(0, True); smm(1, True)
        qmask(2); qmask(4)
        smm(2, True); smm(4, True)
        e("s_waitcnt lgkmcnt(0)")
        e("v_readfirstlane_b32 s78, v6")
        sel(0); sel(3)
        self.xstore("sx", [f"buffer_store_dwordx2 v[{T_}:{T_+1}], v{c.L8}, s[44:47], s58 offen",
                           f"buffer_store_dwordx2 v[{T_+6}:{T_+7}], v{c.L8}, s[44:47], s59 offen"])
        qmask(3); qmask(5)
        smm(3, False); smm(5, False)
        for T in range(4):
            e(f"ds_read_b64_tr_b16 v[{V+4*T}:{V+4*T+1}], v{c.VA+T} offset:{VD-2048}")
            e(f"ds_read_b64_tr_b16 v[{V+4*T+2}:{V+4*T+3}], v{c.VA+T} offset:{VD}")
        for T in range(4):
            e(f"ds_read_b64 v[{XR+2*T}:{XR+2*T+1}], v{c.XA+T} offset:{XRES}")
        e(f"v_mul_f32 v{TMP}, 0x3ea52b5c, v{RQ}")
        e(f"v_mul_f32 v{CJ}, v{TMP}, v{RK}")
        e(f"v_mul_f32 v{CJ+1}, v{TMP}, v{RK+1}")
        e(f"buffer_load_dwordx2 v[{RMT}:{RMT+1}], v{c.L8}, s[44:47], s60 offen sc1")
        e(f"buffer_load_dwordx2 v[{RMT+2}:{RMT+3}], v{c.L8}, s[44:47], s61 offen sc1")
        sel(1); sel(2)
        def softmax(a, b):
            x, y, z = TMP, TMP+1, TMP+2
            for sg in (a, b):
                for jx in range(2):
                    e(f"v_mul_f32 v{T_+2*sg+jx}, v{T_+2*sg+jx}, v{CJ+jx}")
            e(f"v_max_f32 v{x}, v{T_+2*a}, v{T_+2*a+1}")
            e(f"v_max_f32 v{y}, v{T_+2*b}, v{T_+2*b+1}")
            def red(op, inv):
                e(f"v_permlane32_swap_b32 v{x}, v{y}")
                e(f"{op} v{x}, v{x}, v{y}")
                e(f"v_mov_b32 v{y}, v{x}")
                e(f"v_permlane16_swap_b32 v{x}, v{y}")
                e(f"{op} v{x}, v{x}, v{y}")
                if inv: e(f"v_rcp_f32 v{x}, v{x}")
                e(f"v_mov_b32 v{y}, v{x}")
                e(f"v_permlane32_swap_b32 v{x}, v{y}")
            red("v_max_f32", False)
            for sg, m in ((a, x), (b, y)):
                for jx in range(2):
                    e(f"v_sub_f32 v{T_+2*sg+jx}, v{T_+2*sg+jx}, v{m}")
            for sg in (a, b):
                for jx in range(2):
                    e(f"v_exp_f32 v{T_+2*sg+jx}, v{T_+2*sg+jx}")
            e(f"v_add_f32 v{x}, v{T_+2*a}, v{T_+2*a+1}")
            e(f"v_add_f32 v{y}, v{T_+2*b}, v{T_+2*b+1}")
            for sg in (a, b):
                for jx in range(2):
                    e(f"v_mul_f32 v{T_+2*sg+jx}, v{T_+2*sg+jx}, v{RK+jx}")
            red("v_add_f32", True)
            for sg, m in ((a, x), (b, y)):
                for jx in range(2):
                    e(f"v_mul_f32 v{T_+2*sg+jx}, v{T_+2*sg+jx}, v{m}")
            for sg in (a, b):
                e(f"v_cvt_pk_bf16_f32 v{T_+2*sg}, v{T_+2*sg}, v{T_+2*sg+1}")
            for sg in (a, b):
                for i in range(4):
                    e(f"v_perm_b32 v{P+4*sg+i}, v{T_+2*sg}, v{T_+2*sg}, v{c.SEL+i}")
        softmax(1, 2)
        PVS = [(0, 1), (1, 1), (2, 1), (1, 2), (2, 2), (3, 2), (0, 0), (1, 0), (2, 3), (3, 3)]
        O = {k: 72 + 4*i for i, k in enumerate(PVS)}
        def pv(k):
            T, sg = k
            e(f"v_mfma_f32_16x16x32_bf16 v[{O[k]}:{O[k]+3}], v[{V+4*T}:{V+4*T+3}], v[{P+4*sg}:{P+4*sg+3}], 0")
        e("s_waitcnt lgkmcnt(0)")
        for k in PVS[:6]: pv(k)
        e(f"v_add_f32 v{TMP+4}, 1.0, v{RQ}")
        e(f"v_mul_f32 v{TMP+5}, v7, v{RQ}")
        for T in range(4):
            for z in range(2):
                e(f"v_lshlrev_b32 v{A2+4*T+2*z}, 16, v{XR+2*T+z}")
                e(f"v_and_b32 v{A2+4*T+2*z+1}, 0xffff0000, v{XR+2*T+z}")
        for i in range(8):
            e(f"v_pk_fma_f32 v[{A2+2*i}:{A2+2*i+1}], v[{A2+2*i}:{A2+2*i+1}], v[{TMP+4}:{TMP+5}], v[{TMP+4}:{TMP+5}] op_sel:[0,0,1] op_sel_hi:[1,0,1]")
        def cvt(k):
            e(f"v_cvt_pk_bf16_f32 v{O[k]}, v{O[k]}, v{O[k]+1}")
            e(f"v_cvt_pk_bf16_f32 v{O[k]+1}, v{O[k]+2}, v{O[k]+3}")
        for k in PVS[:6]: cvt(k)
        self.st(3)
        e(f"""
        s_mov_b32 s63, 0
        L_sx_poll:
        s_waitcnt vmcnt(0)
        v_max3_u32 v{TMP}, v{RMT}, v{RMT+1}, v{RMT+2}
        v_max_u32 v{TMP}, v{TMP}, v{RMT+3}
        v_cmp_eq_u32 vcc, -1, v{TMP}
        s_add_u32 s63, s63, 1
        s_cmp_eq_u64 vcc, 0
        s_cbranch_scc1 L_sx_ok
        s_cmp_ge_u32 s63, {SPIN}
        s_cbranch_scc1 L_sx_ok
        buffer_load_dwordx2 v[{RMT}:{RMT+1}], v{c.L8}, s[44:47], s60 offen sc1
        buffer_load_dwordx2 v[{RMT+2}:{RMT+3}], v{c.L8}, s[44:47], s61 offen sc1
        s_branch L_sx_poll
        L_sx_ok:
        v_add_f32 v{T_}, v{T_}, v{RMT}
        v_add_f32 v{T_+1}, v{T_+1}, v{RMT+1}
        v_add_f32 v{T_+6}, v{T_+6}, v{RMT+2}
        v_add_f32 v{T_+7}, v{T_+7}, v{RMT+3}
        """)
        self.st(4)
        softmax(0, 3)
        for k in PVS[6:]: pv(k)
        OF = 32
        e(f"""
        s_mul_i32 s58, s29, 7
        s_add_u32 s58, s58, s26
        s_lshl_b32 s61, s58, 7
        s_add_u32 s61, s61, {FL_OFF}
        s_mul_i32 s58, s58, 20480
        s_add_u32 s58, s58, {OX_OFF}
        s_lshl_b32 s59, s30, 11
        s_add_u32 s60, s58, s59
        s_lshl_b32 s62, s30, 2
        s_add_u32 s62, s62, s61
        """)
        for z in range(2):
            e(f"v_cndmask_b32 v{OF+2+z}, v{O[(1,1)]+z}, v{O[(1,2)]+z}, s[68:69]")
            e(f"v_cndmask_b32 v{OF+4+z}, v{O[(2,1)]+z}, v{O[(2,2)]+z}, s[70:71]")
        for k in PVS[6:]: cvt(k)
        for z in range(2):
            e(f"v_cndmask_b32 v{OF+z}, v{O[(0,0)]+z}, v{O[(0,1)]+z}, s[64:65]")
            e(f"v_cndmask_b32 v{OF+2+z}, v{O[(1,0)]+z}, v{OF+2+z}, s[66:67]")
            e(f"v_cndmask_b32 v{OF+4+z}, v{OF+4+z}, v{O[(2,3)]+z}, s[72:73]")
            e(f"v_cndmask_b32 v{OF+6+z}, v{O[(3,2)]+z}, v{O[(3,3)]+z}, s[74:75]")
        self.xstore("ox", [f"buffer_store_dwordx4 v[{OF}:{OF+3}], v{c.L16}, s[44:47], s60 offen",
                           f"buffer_store_dwordx4 v[{OF+4}:{OF+7}], v{c.L16}, s[44:47], s60 offen offset:1024"])
        self.st(5)
        e(f"""
        v_mov_b32 v3, 1
        v_mov_b32 v4, 0
        v_lshlrev_b32 v5, 2, v0
        v_mov_b32 v6, {OOB}
        v_cmp_gt_u32 vcc, 10, v0
        v_cndmask_b32 v5, v6, v5, vcc
        s_waitcnt vmcnt(0)
        s_mov_b64 exec, 1
        """)
        self.xstore("fl", ["buffer_store_dword v3, v4, s[44:47], s62 offen"])
        e("s_mov_b64 exec, -1")
        e("s_barrier")
        e("ds_read_b96 v[8:10], v2 offset:16")
        WB = 112
        def wrd(ks):
            r = []
            hi = ks >= 14
            for T in range(4):
                for u in range(2):
                    b = WB + 16*(ks & 1) + 4*T + 2*u
                    r.append(f"ds_read_b64_tr_b16 v[{b}:{b+1}], v{c.WA+T} offset:{(ks - (14 if hi else 0))*4096 + u*2048}")
            return r
        def gmm(ks, nxt):
            for T in range(4):
                b = WB + 16*(ks & 1) + 4*T
                e(f"s_waitcnt lgkmcnt({6 if nxt else 6 - 2*T})")
                e(f"v_mfma_f32_16x16x32_bf16 v[{A2+4*T}:{A2+4*T+3}], v[{b}:{b+3}], v[{OF+4*ks}:{OF+4*ks+3}], v[{A2+4*T}:{A2+4*T+3}]")
                if nxt:
                    if ks + 1 == 14: e(f"v_add_u32 v{c.WA+T}, {14*4096}, v{c.WA+T}")
                    e(nxt[2*T]); e(nxt[2*T+1])
        e(f"buffer_load_dword v6, v5, s[44:47], s61 offen sc1")
        for x in wrd(0): e(x)
        gmm(0, wrd(1))
        gmm(1, wrd(2))
        e(f"""
        s_mov_b32 s63, 0
        L_fl_poll:
        s_waitcnt vmcnt(0)
        v_cmp_ne_u32 vcc, 0, v6
        s_add_u32 s63, s63, 1
        s_cmp_eq_u32 vcc_lo, 0x3ff
        s_cbranch_scc1 L_fl_ok
        s_cmp_ge_u32 s63, {SPIN}
        s_cbranch_scc1 L_fl_ok
        buffer_load_dword v6, v5, s[44:47], s61 offen sc1
        s_branch L_fl_poll
        L_fl_ok:
        """)
        self.st(6)
        for i in range(1, 10):
            e("s_add_u32 s59, s59, 2048")
            e("s_cmp_eq_u32 s59, 20480")
            e("s_cselect_b32 s59, 0, s59")
            e("s_add_u32 s60, s58, s59")
            e(f"buffer_load_dwordx4 v[{OF+8*i}:{OF+8*i+3}], v{c.L16}, s[44:47], s60 offen sc1")
            e(f"buffer_load_dwordx4 v[{OF+8*i+4}:{OF+8*i+7}], v{c.L16}, s[44:47], s60 offen offset:1024 sc1")
        e(f"""
        v_readfirstlane_b32 s56, v8
        v_readfirstlane_b32 s57, v9
        v_readfirstlane_b32 s62, v10
        v_lshrrev_b32 v3, 3, v0
        v_and_b32 v4, 7, v0
        v_lshrrev_b32 v5, 1, v3
        v_xor_b32 v5, v5, v4
        v_lshlrev_b32 v5, 4, v5
        v_lshl_add_u32 v5, v3, 7, v5
        v_add_u32 v11, s79, v5
        v_xor_b32 v12, 64, v11
        s_lshl_b32 s60, s26, 4
        v_add_u32 v3, s60, v3
        s_cmp_eq_u32 s29, 0
        s_cselect_b32 s60, 1, 15
        v_mul_u32_u24 v5, 1280, v3
        v_lshl_add_u32 v5, v4, 4, v5
        v_mov_b32 v6, {OOB}
        v_cmp_le_u32 vcc, s60, v3
        v_cndmask_b32 v13, v6, v5, vcc
        v_add_u32 v3, 8, v3
        v_add_u32 v5, {8*1280}, v5
        v_cmp_le_u32 vcc, s60, v3
        v_cndmask_b32 v14, v6, v5, vcc
        s_mul_i32 s60, s29, {97*1280}
        s_lshl_b32 s61, s76, 7
        s_add_u32 s60, s60, s61
        """)
        for ks in range(2, 20):
            e(f"s_waitcnt vmcnt({19 - ks})")
            gmm(ks, wrd(ks + 1) if ks < 19 else None)
        self.st(7)
        e(f"""
        s_cmp_eq_u32 s56, 0
        s_cbranch_scc1 L_noy
        s_barrier
        v_lshlrev_b32 v3, 4, v21
        v_add_u32 v3, {YBUF}, v3
        """)
        for tok, sr in ((0, 57), (1, 62)):
            e(f"""
            s_lshr_b32 s61, s{sr}, 4
            s_cmp_eq_u32 s61, s26
            s_cbranch_scc0 L_ny{tok}
            s_and_b32 s61, s{sr}, 15
            """)
            for T in range(4):
                e(f"ds_read_b128 v[{112+4*T}:{115+4*T}], v3 offset:{tok*256 + T*64}")
            e("v_cmp_eq_u32 vcc, s61, v20")
            e("s_and_saveexec_b64 s[80:81], vcc")
            e("s_waitcnt lgkmcnt(0)")
            e("s_nop 7")
            for i in range(16):
                e(f"v_add_f32 v{A2+i}, v{A2+i}, v{112+i}")
            e("s_mov_b64 exec, s[80:81]")
            e(f"L_ny{tok}:")
        e("L_noy:")
        e("s_nop 4")
        for T in range(4):
            e(f"v_cvt_pk_bf16_f32 v{A2+4*T}, v{A2+4*T}, v{A2+4*T+1}")
            e(f"v_cvt_pk_bf16_f32 v{A2+4*T+1}, v{A2+4*T+2}, v{A2+4*T+3}")
            e(f"ds_write_b64 v{c.XA+T}, v[{A2+4*T}:{A2+4*T+1}] offset:{OSCR}")
        e(f"""
        s_waitcnt lgkmcnt(0)
        ds_read_b128 v[32:35], v11 offset:{OSCR}
        ds_read_b128 v[36:39], v12 offset:{OSCR+1024}
        s_waitcnt lgkmcnt(1)
        buffer_store_dwordx4 v[32:35], v13, s[48:51], s60 offen
        s_waitcnt lgkmcnt(0)
        buffer_store_dwordx4 v[36:39], v14, s[48:51], s60 offen
        """)
        self.st(8)
        if self.stamp: e("s_waitcnt vmcnt(0)")
        e("s_branch L_fin")

    def wave7_tail(self):
        e = self.e; c = self
        e("L_w7:")
        self.st(2)
        self.poll_keys("w7", 4, 5, 6, 56, 57, 58)
        e(f"""
        s_mul_i32 s58, s29, 97
        s_cmp_eq_u32 s29, 0
        s_cselect_b32 s59, 1, 15
        s_mov_b32 s62, 0
        """)
        for k in (56, 57):
            e(f"""
            s_and_b32 s{k}, s{k}, 0x7ff
            s_sub_u32 s{k}, 2048, s{k}
            s_sub_i32 s{k}, s{k}, s58
            s_cmp_ge_i32 s{k}, s59
            s_cselect_b32 s{k}, s{k}, 0xffff
            s_cmp_lt_i32 s{k}, 112
            s_cselect_b32 s{k}, s{k}, 0xffff
            s_cselect_b32 s62, 1, s62
            """)
        e(f"""
        v_mov_b32 v8, s62
        v_mov_b32 v9, s56
        v_mov_b32 v10, s57
        v_mov_b32 v2, {INFO}
        ds_write_b96 v2, v[8:10] offset:16
        s_waitcnt lgkmcnt(0)
        s_barrier
        """)
        self.st(3)
        e(f"""
        s_cmp_eq_u32 s62, 0
        s_cbranch_scc1 L_fin
        v_mov_b32 v5, {DBG_FFN}
        s_mov_b32 s63, 0
        L_yp:
        buffer_load_dword v4, v5, s[52:55], 0 offen sc1
        s_add_u32 s63, s63, 1
        s_waitcnt vmcnt(0)
        v_readfirstlane_b32 s58, v4
        s_cmp_ge_u32 s63, {SPIN}
        s_cbranch_scc1 L_ypd
        s_cmp_eq_u32 s58, 27
        s_cbranch_scc0 L_yp
        L_ypd:
        v_mul_u32_u24 v5, 5120, v21
        v_lshl_add_u32 v5, v20, 4, v5
        s_lshl_b32 s58, s76, 8
        s_add_u32 s58, s58, {YP_OFF}
        """)
        self.st(4)
        for n in range(7):
            for tok in range(2):
                b = 32 + 28*tok + 4*n
                e(f"buffer_load_dwordx4 v[{b}:{b+3}], v5, s[44:47], s58 offen offset:{tok*2560} sc1")
            e(f"s_add_u32 s58, s58, {4*5120}")
        e(f"v_lshlrev_b32 v6, 4, v20")
        e(f"v_lshl_add_u32 v6, v21, 2, v6")
        e(f"v_add_u32 v6, {YBUF}, v6")
        e("s_waitcnt vmcnt(0)")
        for tok in range(2):
            b = 32 + 28*tok
            for n in range(1, 7):
                for i in range(4):
                    e(f"v_add_f32 v{b+i}, v{b+i}, v{b+4*n+i}")
            e(f"v_permlane32_swap_b32 v{b}, v{b+2}")
            e(f"v_permlane32_swap_b32 v{b+1}, v{b+3}")
            e(f"v_add_f32 v{b}, v{b}, v{b+2}")
            e(f"v_add_f32 v{b+1}, v{b+1}, v{b+3}")
            e(f"v_permlane16_swap_b32 v{b}, v{b+1}")
            e(f"v_add_f32 v{b}, v{b}, v{b+1}")
            e(f"ds_write_b32 v6, v{b} offset:{tok*256}")
        e("s_waitcnt lgkmcnt(0)")
        e("s_barrier")
        e("s_branch L_fin")

    def router(self):
        e = self.e
        e(f"""
        L_router:
        s_lshl_b32 s29, s27, 1
        s_add_u32 s29, s29, s28
        s_sub_u32 s29, s29, 30
        s_mul_i32 s30, s29, 147
        v_and_b32 v2, 15, v0
        v_lshlrev_b32 v2, 4, v2
        v_lshrrev_b32 v3, 4, v0
        s_lshl_b32 s56, s26, 2
        v_add_u32 v3, s56, v3
        v_add_u32 v4, s30, v3
        v_mul_u32_u24 v5, 1280, v4
        v_add_u32 v5, v5, v2
        v_mov_b32 v7, {OOB}
        v_add_u32 v6, {128*1280}, v5
        v_cmp_gt_u32 vcc, {147-128}, v3
        v_cndmask_b32 v6, v7, v6, vcc
        s_waitcnt lgkmcnt(0)
        """)
        self.srd(32, 4, 2048 * 1280)
        self.srd(36, 12, 1280)
        self.srd(52, 22, 256)
        for q in range(5):
            e(f"buffer_load_dwordx4 v[{20+4*q}:{23+4*q}], v2, s[36:39], 0 offen offset:{256*q}")
        e("s_mov_b32 s56, 0")
        for n in range(5):
            for q in range(5):
                b = 40 + 20*n + 4*q
                if n < 4:
                    e(f"buffer_load_dwordx4 v[{b}:{b+3}], v5, s[32:35], s56 offen offset:{256*q}")
                else:
                    e(f"buffer_load_dwordx4 v[{b}:{b+3}], v6, s[32:35], 0 offen offset:{256*q}")
            if n < 3: e(f"s_add_u32 s56, s56, {32*1280}")
        e("""
        s_mov_b32 s57, 0x3f803f80
        v_mov_b32 v8, 0
        v_mov_b32 v16, 0
        v_mov_b32 v17, 0
        s_waitcnt vmcnt(25)
        """)
        for i in range(20):
            e(f"v_dot2c_f32_bf16 v8, s57, v{20+i}")
        self.row_red("v_add_f32", 8)
        for n in range(5):
            e("v_mov_b32 v9, 0")
            e("v_mov_b32 v10, 0")
            e("v_mov_b32 v11, 0")
            for q in range(5):
                e(f"s_waitcnt vmcnt({24 - 5*n - q})")
                for i in range(4):
                    r = 40 + 20*n + 4*q + i
                    e(f"v_dot2c_f32_bf16 v9, s57, v{r}")
                    e(f"v_dot2c_f32_bf16 v10, v{r}, v{r}")
                    e(f"v_dot2c_f32_bf16 v11, v{20+4*q+i}, v{r}")
            for k in (8, 4, 2, 1):
                for v in (9, 10, 11):
                    e(f"v_add_f32_dpp v{v}, v{v}, v{v} row_ror:{k} row_mask:0xf bank_mask:0xf")
            self.ln_scalars(9, 10, 12, 13, 14)
            e(f"""
            v_rcp_f32 v13, v13
            v_fma_f32 v11, -v12, v8, v11
            v_mul_f32 v11, v11, v13
            v_ashrrev_i32 v12, 31, v11
            v_or_b32 v12, 0x80000000, v12
            v_xor_b32 v11, v11, v12
            v_and_b32 v11, 0xfffff800, v11
            v_add_u32 v12, {32*n}, v4
            v_sub_u32 v13, 2047, v12
            v_or_b32 v11, v11, v13
            v_max_u32 v11, 1, v11
            v_cmp_gt_u32 vcc, 2048, v12
            v_cndmask_b32 v11, 0, v11, vcc
            """)
            if n == 4:
                e(f"v_cmp_gt_u32 vcc, {147-128}, v3")
                e("v_cndmask_b32 v11, 0, v11, vcc")
            e("""
            v_min_u32 v12, v16, v11
            v_max_u32 v16, v16, v11
            v_max_u32 v17, v17, v12
            """)
        e("""
        v_lshlrev_b32 v2, 3, v3
        ds_write_b64 v2, v[16:17]
        s_waitcnt lgkmcnt(0)
        s_barrier
        s_cmp_eq_u32 s26, 0
        s_cbranch_scc0 L_fin
        v_lshlrev_b32 v2, 2, v0
        ds_read_b32 v4, v2
        s_waitcnt lgkmcnt(0)
        """)
        self.top2(4, 6, 56, 57, 58)
        e("""
        v_mov_b32 v4, s56
        v_mov_b32 v5, s57
        s_lshl_b32 s58, s29, 3
        v_mov_b32 v6, s58
        s_mov_b64 exec, 1
        buffer_store_dwordx2 v[4:5], v6, s[52:55], 0 offen sc1
        s_branch L_fin
        """)

    def ffn(self):
        e = self.e
        XN = 81920; H = XN + 4096; SIG = XN + 4608
        e(f"""
        L_ffn:
        s_cmp_ge_u32 s28, 27
        s_cbranch_scc1 L_end
        v_lshrrev_b32 v2, 3, v0
        v_and_b32 v3, 7, v0
        v_bfe_u32 v4, v0, 4, 1
        s_and_b32 s56, s26, 1
        s_lshl_b32 s56, s56, 1
        v_or_b32 v4, s56, v4
        v_xor_b32 v4, v4, v3
        v_lshlrev_b32 v4, 4, v4
        v_mul_u32_u24 v10, 3456, v2
        v_add_u32 v10, v10, v4
        v_xor_b32 v4, 64, v4
        v_mul_u32_u24 v11, 3456, v2
        v_add_u32 v11, v11, v4
        s_mul_i32 s57, s26, {8*3456}
        s_lshl_b32 s58, s28, 7
        s_add_u32 s57, s57, s58
        s_lshl_b32 s56, s26, 10
        s_waitcnt lgkmcnt(0)
        """)
        self.srd(32, 14, 640 * 3456)
        self.srd(36, 16, 640 * 3456)
        for reg in range(2):
            for n in range(5):
                e(f"s_add_u32 m0, s56, {reg*81920 + n*8192}")
                e("s_nop 0")
                e("buffer_load_dwordx4 v10, s[32:35], s57 offen nt lds")
                e(f"s_add_u32 m0, s56, {reg*81920 + 40960 + n*8192}")
                e("s_nop 0")
                e("buffer_load_dwordx4 v11, s[36:39], s57 offen nt lds")
                e(f"s_add_u32 s57, s57, {64*3456}")
        self.srd(40, 18, 1728 * 1280)
        self.srd(44, 24, WS_BYTES)
        self.srd(48, 4, 2048 * 1280)
        self.srd(52, 22, 256)
        e(f"""
        v_lshrrev_b32 v21, 4, v0
        v_and_b32 v20, 15, v0
        v_bfe_u32 v2, v0, 2, 2
        v_lshl_add_u32 v3, v21, 3, v2
        v_bfe_u32 v5, v0, 1, 1
        v_lshrrev_b32 v6, 1, v2
        v_and_b32 v7, 1, v21
        v_lshl_or_b32 v6, v7, 1, v6
        v_lshl_or_b32 v6, v5, 2, v6
        v_xor_b32 v6, s26, v6
        v_lshlrev_b32 v6, 4, v6
        v_lshl_add_u32 v6, v3, 7, v6
        v_and_b32 v8, 1, v0
        v_lshl_add_u32 v6, v8, 3, v6
        v_mul_u32_u24 v8, 40960, v5
        v_add_u32 v12, v6, v8
        v_add_u32 v13, 81920, v12
        v_lshl_or_b32 v6, v7, 2, v2
        v_xor_b32 v6, s26, v6
        v_lshlrev_b32 v6, 5, v6
        v_lshl_add_u32 v6, v3, 8, v6
        v_and_b32 v8, 3, v0
        v_lshl_add_u32 v14, v8, 3, v6
        v_add_u32 v15, 65536, v14
        s_and_b32 s58, s26, 2
        s_lshl_b32 s58, s58, 1
        v_or_b32 v6, s58, v21
        v_lshlrev_b32 v6, 1, v6
        v_xor_b32 v6, v6, v20
        v_lshlrev_b32 v6, 4, v6
        v_mul_u32_u24 v16, 1280, v21
        v_add_u32 v16, v16, v6
        s_waitcnt vmcnt(10)
        s_barrier
        """)
        WG = 40
        def frd(reg):
            for k in range(10):
                for u in range(2):
                    b = WG + 40*reg + 4*k + 2*u
                    e(f"ds_read_b64_tr_b16 v[{b}:{b+1}], v{12+reg} offset:{k*4096 + u*512}")
                if k == 5: e("s_waitcnt lgkmcnt(4)")
            e("s_waitcnt lgkmcnt(0)")
        frd(0)
        e("s_barrier")
        self.st(1)
        e(f"""
        s_cmp_ge_u32 s26, 4
        s_cbranch_scc0 L_f_nod
        s_sub_u32 s56, s26, 4
        s_mul_i32 s57, s28, 64
        s_lshl_b32 s58, s56, 2
        s_add_u32 s57, s57, s58
        s_mul_i32 s57, s57, 1280
        s_lshl_b32 s56, s56, 10
        """)
        for n in range(4):
            for seg in range(5):
                e(f"s_add_u32 m0, s56, {seg*16384 + n*4096 - seg*256}")
                e("s_nop 0")
                off = f" offset:{seg*256}" if seg else ""
                e(f"buffer_load_dwordx4 v16, s[40:43], s57 offen{off} nt lds")
            e(f"s_add_u32 s57, s57, {16*1280}")
        e("""
        s_waitcnt vmcnt(20)
        s_branch L_f_d
        L_f_nod:
        s_waitcnt vmcnt(0)
        L_f_d:
        s_barrier
        """)
        frd(1)
        e("s_barrier")
        self.st(2)
        e("s_cmp_ge_u32 s26, 2")
        e("s_cbranch_scc1 L_f_x")
        self.poll_keys("f", 4, 5, 6, 56, 57, 58)
        self.st(3)
        e(f"""
        s_cmp_eq_u32 s26, 0
        s_cselect_b32 s56, s56, s57
        s_and_b32 s57, s56, 0x7ff
        s_sub_u32 s57, 2047, s57
        s_mul_i32 s57, s57, 1280
        v_lshlrev_b32 v5, 2, v0
        """)
        for q in range(5):
            e(f"buffer_load_dword v{24+q}, v5, s[48:51], s57 offen offset:{256*q}")
        e(f"""
        s_and_b32 s56, s56, 0xfffff800
        s_or_b32 s56, s56, 0x400
        s_ashr_i32 s58, s56, 31
        s_not_b32 s58, s58
        s_or_b32 s58, s58, 0x80000000
        s_xor_b32 s56, s56, s58
        v_mov_b32 v6, s56
        """)
        self.rbf(6, 6)
        e(f"""
        v_mul_f32 v6, 0xbfb8aa3b, v6
        v_exp_f32 v6, v6
        v_add_f32 v6, 1.0, v6
        v_rcp_f32 v6, v6
        """)
        self.rbf(6, 6)
        e(f"""
        s_lshl_b32 s58, s26, 2
        s_add_u32 s58, s58, {SIG}
        v_mov_b32 v7, s58
        ds_write_b32 v7, v6
        s_mov_b32 s59, 0x3f803f80
        v_mov_b32 v9, 0
        v_mov_b32 v10, 0
        s_waitcnt vmcnt(0)
        """)
        for q in range(5):
            e(f"v_dot2c_f32_bf16 v9, s59, v{24+q}")
            e(f"v_dot2c_f32_bf16 v10, v{24+q}, v{24+q}")
        for k in (8, 4, 2, 1):
            for v in (9, 10):
                e(f"v_add_f32_dpp v{v}, v{v}, v{v} row_ror:{k} row_mask:0xf bank_mask:0xf")
        e("""
        v_permlane32_swap_b32 v9, v10
        v_add_f32 v9, v9, v10
        v_mov_b32 v10, v9
        v_permlane16_swap_b32 v9, v10
        v_add_f32 v9, v9, v10
        v_mov_b32 v10, v9
        v_permlane32_swap_b32 v9, v10
        """)
        self.ln_scalars(9, 10, 17, 18, 19)
        e("v_rcp_f32 v18, v18")
        e("s_mul_i32 s58, s26, 1280")
        e(f"s_add_u32 s58, s58, {XN}")
        e("v_add_u32 v5, s58, v5")
        for q in range(5):
            e(f"""
            v_lshlrev_b32 v30, 16, v{24+q}
            v_and_b32 v31, 0xffff0000, v{24+q}
            v_sub_f32 v30, v30, v17
            v_sub_f32 v31, v31, v17
            v_cvt_pk_bf16_f32 v31, v30, v31
            v_lshlrev_b32 v30, 16, v31
            v_and_b32 v31, 0xffff0000, v31
            v_mul_f32 v30, v30, v18
            v_mul_f32 v31, v31, v18
            v_cvt_pk_bf16_f32 v{32+q}, v30, v31
            ds_write_b32 v5, v{32+q} offset:{256*q}
            """)
        e(f"""
        L_f_x:
        v_and_b32 v2, 1, v0
        v_mul_u32_u24 v3, 1280, v2
        v_lshl_add_u32 v3, v21, 4, v3
        v_add_u32 v3, {XN}, v3
        v_lshlrev_b32 v4, 7, v2
        v_lshl_add_u32 v4, v21, 4, v4
        v_add_u32 v4, {H}, v4
        v_lshlrev_b32 v5, 2, v2
        v_add_u32 v5, {SIG}, v5
        s_waitcnt lgkmcnt(0)
        s_barrier
        """)
        self.st(4)
        XB = 120
        for k in range(20):
            e(f"ds_read_b128 v[{XB+4*k}:{XB+4*k+3}], v3 offset:{64*k}")
            if k >= 8:
                kk = k - 8
                e("s_waitcnt lgkmcnt(8)")
                e(f"v_mfma_f32_16x16x32_bf16 v[24:27], v[{WG+4*kk}:{WG+4*kk+3}], v[{XB+4*kk}:{XB+4*kk+3}], {'0' if kk == 0 else 'v[24:27]'}")
        for kk in range(12, 20):
            e(f"s_waitcnt lgkmcnt({19-kk})")
            e(f"v_mfma_f32_16x16x32_bf16 v[24:27], v[{WG+4*kk}:{WG+4*kk+3}], v[{XB+4*kk}:{XB+4*kk+3}], v[24:27]")
        e("ds_read_b32 v22, v5")
        for i in range(4):
            self.rbf(24+i, 24+i)
        for i in range(4):
            e(f"v_mov_b32 v{28+i}, v{24+i}")
        for i in range(4):
            e(f"v_permlane32_swap_b32 v{24+i}, v{28+i}")
        for i in range(4):
            e(f"v_mul_f32 v{32+i}, 0xbfb8aa3b, v{24+i}")
        for i in range(4):
            e(f"v_exp_f32 v{32+i}, v{32+i}")
        for i in range(4):
            e(f"v_add_f32 v{32+i}, 1.0, v{32+i}")
        for i in range(4):
            e(f"v_rcp_f32 v{32+i}, v{32+i}")
        for i in range(4):
            e(f"v_mul_f32 v{24+i}, v{24+i}, v{32+i}")
        for i in range(4):
            self.rbf(24+i, 24+i)
        for i in range(4):
            e(f"v_mul_f32 v{24+i}, v{24+i}, v{28+i}")
        e(f"""
        v_cvt_pk_bf16_f32 v24, v24, v25
        v_cvt_pk_bf16_f32 v25, v26, v27
        v_lshlrev_b32 v6, 7, v2
        v_and_b32 v7, 1, v21
        v_lshl_add_u32 v6, v7, 3, v6
        s_lshl_b32 s58, s26, 4
        s_add_u32 s58, s58, {H}
        v_add_u32 v6, s58, v6
        ds_write_b64 v6, v[24:25]
        s_waitcnt vmcnt(0) lgkmcnt(0)
        s_barrier
        """)
        self.st(5)
        e("ds_read_b128 v[24:27], v4")
        e("ds_read_b128 v[28:31], v4 offset:64")
        for seg in range(5):
            for k in range(2):
                for u in range(2):
                    b = WG + 8*seg + 4*k + 2*u
                    a, off = (14, seg*16384) if seg < 4 else (15, 0)
                    e(f"ds_read_b64_tr_b16 v[{b}:{b+1}], v{a} offset:{off + k*8192 + u*1024}")
            if seg == 2: e("s_waitcnt lgkmcnt(4)")
        e(f"""
        v_mul_u32_u24 v6, 2560, v20
        v_lshl_add_u32 v6, v21, 4, v6
        v_mov_b32 v7, {OOB}
        v_cmp_gt_u32 vcc, 2, v20
        v_cndmask_b32 v6, v7, v6, vcc
        s_mul_i32 s58, s28, 5120
        s_lshl_b32 s59, s26, 6
        s_add_u32 s58, s58, s59
        s_add_u32 s58, s58, {YP_OFF}
        s_waitcnt lgkmcnt(0)
        """)
        for k in range(2):
            for seg in range(5):
                d = XB + 4*seg; b = WG + 8*seg + 4*k
                e(f"v_mfma_f32_16x16x32_bf16 v[{d}:{d+3}], v[{b}:{b+3}], v[{24+4*k}:{27+4*k}], {'0' if k == 0 else f'v[{d}:{d+3}]'}")
        for seg in range(5):
            d = XB + 4*seg
            for i in range(4):
                e(f"v_mul_f32 v{d+i}, v{d+i}, v22")
            e(f"buffer_store_dwordx4 v[{d}:{d+3}], v6, s[44:47], s58 offen offset:{seg*512} sc1")
        e(f"""
        s_waitcnt vmcnt(0)
        s_barrier
        s_cmp_eq_u32 s26, 0
        s_cbranch_scc0 L_fin
        v_mov_b32 v4, 1
        v_mov_b32 v5, {DBG_FFN}
        s_mov_b64 exec, 1
        buffer_atomic_add v4, v5, s[52:55], 0 offen sc1
        """)


if __name__ == "__main__":
    import argparse
    ap = argparse.ArgumentParser()
    ap.add_argument("-o", default=f"cdna_kernels/{NAME}.s")
    ap.add_argument("--stamp", action="store_true")
    ap.add_argument("--remote", action="store_true")
    ap.add_argument("--fx", type=int, default=7)
    ap.add_argument("--cx", type=int, default=11)
    ap.add_argument("--hold", type=int, default=0)
    a = ap.parse_args()
    open(a.o, "w").write(G(FX=a.fx, stamp=a.stamp, force_remote=a.remote, cx=a.cx, diag_hold=a.hold).gen())
```

```python
import sys
from hz import pad

NAME = "parallel_sum__sliding_local_dilated__moe_arch_mod__prompt"

HDR = """; Kernarg layout for this problem (88 bytes, ptrs only, base s[0:1]):
; @launch grid=(256,1,1) block=(512,1,1) lds=163840
"""

SLOT = 38912
XOFF = 24576
QD, KD, VD = 0, 14336, 28672
OSCR = 43008
XRES = SLOT + XOFF
WO = 2 * SLOT
MISC = 159744
NEGM, RSTD, INFO, YBUF = MISC, MISC + 512, MISC + 1024, MISC + 1280
SX_OFF, OX_OFF, FL_OFF, YP_OFF = 0, 0x180000, 0x480000, 0x4C0000
WS_BYTES = YP_OFF + 27 * 5120
STAMP_OFF = 0x800000
OOB = 0x7FFF0000
DBG_GRP, DBG_FFN = 128, 212
SPIN = 40000
BIG = 0xF149F2CA


def lanemask(fn):
    m = 0
    for l in range(64):
        if fn(l): m |= 1 << l
    return m & 0xFFFFFFFF, m >> 32


class G:
    def __init__(self, FX=7, stamp=False, force_remote=False, cx=11, diag_hold=0, hold_x=-1):
        self.l = []
        self.diag_hold = diag_hold; self.hold_x = hold_x
        self.FX = FX; self.stamp = stamp; self.force_remote = force_remote; self.cx = cx
        self.nst = 0

    def e(self, s):
        for x in s.strip().split("\n"):
            self.l.append(x.strip())

    def srd(self, d, b, nbytes, shift=0):
        e = self.e
        if shift:
            e(f"s_sub_u32 s{d}, s{b}, {shift}")
            e(f"s_subb_u32 s{d+1}, s{b+1}, 0")
        else:
            e(f"s_mov_b32 s{d}, s{b}")
            e(f"s_mov_b32 s{d+1}, s{b+1}")
        e(f"s_mov_b32 s{d+2}, {nbytes + shift}")
        e(f"s_mov_b32 s{d+3}, 0x00020000")

    def st(self, i):
        if self.stamp:
            self.e(f"s_memrealtime s[{82+2*i}:{83+2*i}]")

    def smask(self, d, fn):
        lo, hi = lanemask(fn)
        self.e(f"s_mov_b32 s{d}, {lo:#x}")
        self.e(f"s_mov_b32 s{d+1}, {hi:#x}")

    def rbf(self, d, s):
        self.e(f"v_cvt_pk_bf16_f32 v{d}, v{s}, v{s}")
        self.e(f"v_and_b32 v{d}, 0xffff0000, v{d}")

    def ln_scalars(self, s1, s2, mean, sd, t):
        e = self.e
        e(f"v_mul_f32 v{s1}, 0x3acccccd, v{s1}")
        e(f"v_mul_f32 v{s2}, 0x3acccccd, v{s2}")
        e(f"v_fma_f32 v{t}, -v{s1}, v{s1}, v{s2}")
        e(f"v_max_f32 v{t}, 0, v{t}")
        self.rbf(t, t)
        e(f"v_add_f32 v{t}, 0x3727c5ac, v{t}")
        self.rbf(t, t)
        e(f"v_sqrt_f32 v{t}, v{t}")
        self.rbf(mean, s1)
        self.rbf(sd, t)

    def row_red(self, op, v):
        for k in (8, 4, 2, 1):
            self.e(f"{op}_dpp v{v}, v{v}, v{v} row_ror:{k} row_mask:0xf bank_mask:0xf")

    def wave_umax(self, v, t, sd, st):
        e = self.e
        e(f"v_mov_b32 v{t}, v{v}")
        self.row_red("v_max_u32", t)
        e(f"v_readlane_b32 s{sd}, v{t}, 0")
        e(f"v_readlane_b32 s{st}, v{t}, 16")
        e(f"v_readlane_b32 s{st+1}, v{t}, 32")
        e(f"v_readlane_b32 s{st+2}, v{t}, 48")
        e(f"s_max_u32 s{sd}, s{sd}, s{st}")
        e(f"s_max_u32 s{st+1}, s{st+1}, s{st+2}")
        e(f"s_max_u32 s{sd}, s{sd}, s{st+1}")

    def top2(self, v, t, k1, k2, st):
        e = self.e
        self.wave_umax(v, t, k1, st)
        e(f"v_cmp_ne_u32 vcc, s{k1}, v{v}")
        e(f"v_cndmask_b32 v{v}, 0, v{v}, vcc")
        self.wave_umax(v, t, k2, st)

    def poll_keys(self, tag, vk, va, t, k1, k2, st):
        e = self.e
        e(f"v_lshlrev_b32 v{va}, 2, v0")
        e(f"v_cmp_gt_u32 vcc, 28, v0")
        e(f"v_mov_b32 v{t}, {OOB}")
        e(f"v_cndmask_b32 v{va}, v{t}, v{va}, vcc")
        e(f"s_mov_b32 s{st}, 0")
        e(f"L_pk_{tag}:")
        e(f"buffer_load_dword v{vk}, v{va}, s[52:55], 0 offen sc1")
        e(f"s_add_u32 s{st}, s{st}, 1")
        e("s_waitcnt vmcnt(0)")
        e(f"v_cmp_ne_u32 vcc, 0, v{vk}")
        e(f"s_cmp_ge_u32 s{st}, {SPIN}")
        e(f"s_cbranch_scc1 L_pkd_{tag}")
        e("s_cmp_eq_u32 vcc_lo, 0x0fffffff")
        e(f"s_cbranch_scc0 L_pk_{tag}")
        e(f"L_pkd_{tag}:")
        self.top2(vk, t, k1, k2, st)

    def loader_stage(self):
        e = self.e
        e("s_lshl_b32 s58, s31, 7")
        e("s_add_u32 s58, s58, s57")
        e(f"s_add_u32 m0, s56, {XOFF}")
        e("s_mov_b64 exec, s[60:61]")
        e("buffer_load_dwordx4 v10, s[32:35], s58 offen lds")
        e("s_mov_b64 exec, -1")
        for n in range(1, 7):
            e("s_add_u32 m0, m0, 2048")
            e(f"s_add_u32 s58, s58, {16*1280}")
            e("buffer_load_dwordx4 v10, s[32:35], s58 offen lds")
        e("s_mov_b32 m0, s56")
        e(f"s_mul_i32 s59, s31, {64*3840}")
        for n in range(4):
            for a in range(3):
                off = f" offset:{a*1280}" if a else ""
                e(f"buffer_load_dwordx4 v11, s[36:39], s59 offen{off} lds")
                if a < 2:
                    e(f"s_add_u32 m0, m0, {8192-1280}")
                elif n < 3:
                    e(f"s_sub_u32 m0, m0, {2*(8192-1280) - 2048}")
                    e(f"s_add_u32 s59, s59, {16*3840}")
        e("s_add_u32 s31, s31, 1")
        e("s_cmp_eq_u32 s31, 10")
        e("s_cselect_b32 s31, 0, s31")
        e(f"s_add_u32 s56, s56, {SLOT}")
        e(f"s_cmp_ge_u32 s56, {4*SLOT}")
        e(f"s_cselect_b32 s58, {4*SLOT}, 0")
        e("s_sub_u32 s56, s56, s58")

    def wo_loads(self, n):
        e = self.e
        for _ in range(n):
            e("buffer_load_dwordx4 v12, s[40:43], s59 offen lds")
            e("s_add_u32 m0, m0, 2048")
            e(f"s_add_u32 s59, s59, {16*1280}")
            e(f"s_cmp_eq_u32 s59, {640*1280}")
            e("s_cselect_b32 s59, 0, s59")

    def xstore(self, tag, text):
        e = self.e
        e("s_cmp_eq_u32 s78, 1")
        e(f"s_cbranch_scc0 L_xr_{tag}")
        for t in text: e(t)
        e(f"s_branch L_xd_{tag}")
        e(f"L_xr_{tag}:")
        for t in text: e(t + " sc1")
        e(f"L_xd_{tag}:")

    def gen(self):
        e = self.e
        kn = NAME + "_kernel"
        e(f"""
        .amdgcn_target "amdgcn-amd-amdhsa--gfx950"
        .text
        .globl {kn}
        .p2align 8
        .type {kn},@function
        {kn}:
        """)
        self.st(0)
        if self.diag_hold: e("s_memrealtime s[82:83]")
        e(f"""
        s_load_dwordx16 s[4:19], s[0:1], 0
        s_load_dwordx4 s[20:23], s[0:1], 64
        s_load_dwordx2 s[24:25], s[0:1], 80
        s_cmp_ge_u32 s2, 256
        s_cbranch_scc1 L_end
        v_lshrrev_b32 v1, 6, v0
        v_and_b32 v0, 63, v0
        v_readfirstlane_b32 s26, v1
        s_add_u32 s27, s2, {7 - self.FX}
        s_and_b32 s27, s27, 7
        s_lshr_b32 s28, s2, 3
        s_cmp_eq_u32 s27, 7
        s_cbranch_scc1 L_ffn
        s_cmp_ge_u32 s28, 30
        s_cbranch_scc1 L_router
        s_mul_i32 s56, s28, 26
        s_lshr_b32 s56, s56, 8
        s_mul_i32 s30, s56, 10
        s_sub_u32 s30, s28, s30
        s_mul_i32 s29, s27, 3
        s_add_u32 s29, s29, s56
        s_mul_i32 s31, s27, {self.cx}
        s_lshr_b32 s31, s31, 3
        s_add_u32 s31, s31, s30
        s_cmp_ge_u32 s31, 10
        s_cselect_b32 s56, 10, 0
        s_sub_u32 s31, s31, s56
        s_sub_u32 s76, s31, 1
        s_cmp_eq_u32 s31, 0
        s_cselect_b32 s76, 9, s76
        s_mov_b32 s3, 0
        s_cmp_lt_u32 s26, 4
        s_cbranch_scc1 L_const
        s_cmp_ge_u32 s26, 6
        s_cbranch_scc1 L_st_pre
        """)
        e(f"""
        s_mov_b32 s3, 1
        s_sub_u32 s62, s26, 4
        v_lshrrev_b32 v2, 3, v0
        v_and_b32 v3, 7, v0
        v_lshrrev_b32 v4, 4, v0
        s_lshl_b32 s56, s62, 2
        v_add_u32 v5, s56, v4
        v_xor_b32 v5, v5, v3
        v_lshlrev_b32 v5, 4, v5
        v_mul_u32_u24 v10, 1280, v2
        v_add_u32 v10, v10, v5
        v_and_b32 v5, 1, v4
        v_lshlrev_b32 v5, 1, v5
        v_or_b32 v5, s56, v5
        v_xor_b32 v5, v5, v3
        v_lshlrev_b32 v5, 4, v5
        v_mul_u32_u24 v11, 3840, v2
        v_add_u32 v11, v11, v5
        s_mul_i32 s57, s62, {8*3840}
        s_lshl_b32 s58, s30, 7
        s_add_u32 s57, s57, s58
        v_add_u32 v11, s57, v11
        s_mul_i32 s57, s29, 97
        s_lshl_b32 s58, s62, 3
        s_add_u32 s57, s57, s58
        s_mul_i32 s57, s57, 1280
        s_lshl_b32 s56, s62, 10
        s_cmp_eq_u32 s62, 0
        s_cselect_b32 s60, 0xffffff00, -1
        s_mov_b32 s61, -1
        s_waitcnt lgkmcnt(0)
        """)
        self.srd(32, 4, 2048 * 1280, shift=1280)
        self.srd(36, 6, 640 * 3840)
        self.loader_stage()
        self.srd(40, 8, 640 * 1280)
        e(f"""
        v_lshlrev_b32 v5, 1, v4
        v_xor_b32 v5, v5, v3
        v_lshlrev_b32 v5, 4, v5
        v_mul_u32_u24 v12, 1280, v2
        v_add_u32 v12, v12, v5
        s_mul_i32 s58, s62, {8*1280}
        s_lshl_b32 s59, s76, 7
        s_add_u32 s58, s58, s59
        v_add_u32 v12, s58, v12
        s_branch L_const
        """)
        e(f"""
        L_st_pre:
        s_mov_b32 s3, 2
        v_mov_b32 v4, 0x3f803f80
        v_mov_b32 v5, v4
        v_mov_b32 v6, v4
        v_mov_b32 v7, v4
        v_lshrrev_b32 v2, 3, v0
        v_and_b32 v2, 3, v2
        v_mul_u32_u24 v2, {SLOT}, v2
        v_and_b32 v3, 7, v0
        v_lshlrev_b32 v3, 4, v3
        v_add_u32 v2, v2, v3
        ds_write_b128 v2, v[4:7] offset:{XOFF}
        s_waitcnt lgkmcnt(0)
        """)
        self.srd(44, 24, WS_BYTES)
        e("s_cmp_eq_u32 s26, 7")
        e("s_cbranch_scc0 L_const")
        self.prefill("")
        self.consts()
        e("""
        s_cmp_eq_u32 s3, 0
        s_cbranch_scc1 L_mf
        s_cmp_eq_u32 s3, 2
        s_cbranch_scc1 L_st
        """)
        e("s_mov_b32 s63, 1")
        e("L_ld_loop:")
        self.loader_stage()
        e("""
        s_add_u32 s63, s63, 1
        s_waitcnt vmcnt(19)
        s_barrier
        s_cmp_lt_u32 s63, 10
        s_cbranch_scc1 L_ld_loop
        """)
        e("s_lshl_b32 s58, s62, 10")
        e(f"s_add_u32 m0, s58, {WO}")
        e(f"s_mul_i32 s59, s30, {64*1280}")
        self.wo_loads(19)
        e("s_waitcnt vmcnt(19)")
        e("s_barrier")
        self.st(1)
        self.wo_loads(12)
        e("s_barrier")
        self.wo_loads(9)
        e("s_branch L_pre_att")
        self.stats_role()
        self.mfma_role()
        self.attention()
        self.wave7_tail()
        self.router()
        self.ffn()
        e("L_fin:")
        if self.diag_hold:
            if self.hold_x >= 0:
                e("s_and_b32 s86, s2, 7")
                e(f"s_cmp_eq_u32 s86, {self.hold_x}")
                e("s_cbranch_scc0 L_end")
            e("L_hold:")
            e("s_memrealtime s[84:85]")
            e("s_waitcnt lgkmcnt(0)")
            e("s_sub_u32 s86, s84, s82")
            e(f"s_cmp_lt_u32 s86, {self.diag_hold}")
            e("s_cbranch_scc1 L_hold")
        if self.stamp:
            self.st(9)
            e("s_waitcnt lgkmcnt(0)")
            self.srd(44, 24, 1 << 24)
            e("s_lshl_b32 s56, s2, 3")
            e("s_add_u32 s56, s56, s26")
            e("s_lshl_b32 s56, s56, 6")
            e(f"s_add_u32 s56, s56, {STAMP_OFF}")
            e("s_mov_b64 exec, -1")
            for i in range(10):
                e(f"v_mov_b32 v{4+i}, s{82+2*i}")
            e("v_mov_b32 v14, 0")
            e("v_mov_b32 v15, 0")
            e("v_mov_b32 v2, 0")
            e("s_mov_b64 exec, 1")
            for i in range(3):
                e(f"buffer_store_dwordx4 v[{4+4*i}:{7+4*i}], v2, s[44:47], s56 offen offset:{16*i}")
        e("L_end:")
        e("s_endpgm")
        body = pad(self.l)
        tail = f""".section .rodata,"a"
.p2align 6
.amdhsa_kernel {kn}
  .amdhsa_next_free_vgpr 256
  .amdhsa_next_free_sgpr 102
  .amdhsa_accum_offset 256
  .amdhsa_group_segment_fixed_size 0
  .amdhsa_kernarg_size 88
  .amdhsa_user_sgpr_count 2
  .amdhsa_user_sgpr_kernarg_segment_ptr 1
  .amdhsa_system_sgpr_workgroup_id_x 1
  .amdhsa_float_denorm_mode_32 3
.end_amdhsa_kernel
"""
        return HDR + "\n".join(body) + "\n" + tail

    def prefill(self, aux):
        e = self.e
        e(f"""
        v_mov_b32 v4, -1
        v_mov_b32 v5, -1
        v_mov_b32 v6, -1
        v_mov_b32 v7, -1
        v_lshlrev_b32 v2, 4, v0
        s_mul_i32 s58, s29, 10
        s_add_u32 s58, s58, s30
        s_mul_i32 s58, s58, 7168
        s_add_u32 s59, s58, 4096
        """)
        for i in range(7):
            e(f"buffer_store_dwordx4 v[4:7], v2, s[44:47], s{58 + i//4} offen offset:{(i%4)*1024}{aux}")
        e(f"""
        v_lshlrev_b32 v2, 7, v0
        v_mov_b32 v3, {OOB}
        v_cmp_gt_u32 vcc, 7, v0
        v_cndmask_b32 v2, v3, v2, vcc
        v_mov_b32 v8, 0
        s_mul_i32 s58, s29, 896
        s_lshl_b32 s59, s30, 2
        s_add_u32 s58, s58, s59
        s_add_u32 s58, s58, {FL_OFF}
        buffer_store_dword v8, v2, s[44:47], s58 offen{aux}
        """)

    QA = 200; VA = 202; WA = 206; RQ = 210; RK = 211; BC = 216; BP = 220; SEL = 224; QM = 228; XA = 240; L8 = 244; L16 = 245

    def consts(self):
        e = self.e
        c = self
        e(f"""
        L_const:
        s_cmp_ge_u32 s30, 5
        s_cselect_b32 s77, 5, 0
        s_sub_u32 s77, s30, s77
        s_lshl_b32 s79, s26, 11
        v_and_b32 v20, 15, v0
        v_lshrrev_b32 v21, 4, v0
        v_lshrrev_b32 v22, 1, v20
        v_lshlrev_b32 v23, 7, v20
        v_add_u32 v23, s79, v23
        v_xor_b32 v24, v21, v22
        v_lshl_add_u32 v{c.QA}, v24, 4, v23
        v_xor_b32 v{c.QA+1}, 64, v{c.QA}
        v_lshrrev_b32 v24, 1, v21
        v_xor_b32 v24, v24, v22
        v_lshl_add_u32 v24, v24, 4, v23
        v_and_b32 v25, 1, v21
        v_lshl_add_u32 v{c.XA}, v25, 3, v24
        v_xor_b32 v{c.XA+1}, 32, v{c.XA}
        v_xor_b32 v{c.XA+2}, 64, v{c.XA}
        v_xor_b32 v{c.XA+3}, 0x60, v{c.XA}
        v_lshrrev_b32 v24, 2, v0
        v_and_b32 v25, 3, v0
        v_bfe_u32 v26, v24, 1, 2
        v_lshlrev_b32 v26, 5, v26
        v_lshl_add_u32 v26, v24, 7, v26
        v_lshl_add_u32 v27, v25, 3, v26
        v_add_u32 v{c.WA}, {WO}, v27
        v_lshrrev_b32 v28, 3, v24
        v_lshlrev_b32 v28, 4, v28
        v_xor_b32 v27, v27, v28
        v_add_u32 v{c.VA}, s79, v27
        """)
        for T in range(1, 4):
            e(f"v_xor_b32 v{c.WA+T}, {T*32}, v{c.WA}")
            e(f"v_xor_b32 v{c.VA+T}, {T*32}, v{c.VA}")
        e(f"""
        s_lshl_b32 s58, s26, 4
        v_add_u32 v24, s58, v20
        v_lshlrev_b32 v{c.RQ}, 2, v24
        v_and_b32 v24, 1, v20
        v_lshl_add_u32 v24, v21, 2, v24
        v_add_u32 v24, s58, v24
        v_lshlrev_b32 v{c.L8}, 3, v0
        v_lshlrev_b32 v{c.L16}, 4, v0
        v_mov_b32 v29, 0x0c0c0c0c
        v_mov_b32 v30, {BIG:#x}
        """)
        self.smask(66, lambda l: l & 1)
        for jx in range(2):
            self.smask(64, lambda l: 4*(l >> 4) + 2*jx + (l & 1) <= (l & 15))
            lo, hi = (0x0c0c0100, 0x01000c0c) if jx == 0 else (0x0c0c0302, 0x03020c0c)
            e(f"""
            v_add_u32 v25, {2*jx}, v24
            v_add_u32 v26, -16, v25
            v_cndmask_b32 v25, v26, v25, s[64:65]
            v_max_i32 v25, 0, v25
            v_lshlrev_b32 v{c.RK+jx}, 2, v25
            v_mov_b32 v26, {lo:#x}
            v_mov_b32 v27, {hi:#x}
            v_cndmask_b32 v26, v26, v27, s[66:67]
            v_cndmask_b32 v{c.SEL+2+jx}, v29, v26, s[64:65]
            v_cndmask_b32 v{c.SEL+jx}, v26, v29, s[64:65]
            """)
        e("s_cmp_eq_u32 s26, 0")
        for i in range(4):
            lo, hi = lanemask(lambda l: ((i ^ l) & 1) == 0 and 4*(l >> 4) + i <= (l & 15))
            if i == 0:
                e(f"s_mov_b32 s64, {lo:#x}")
                e(f"s_cselect_b32 s64, {lo & 0xffff0000:#x}, s64")
            else:
                e(f"s_mov_b32 s64, {lo:#x}")
            e(f"s_mov_b32 s65, {hi:#x}")
            e(f"v_cndmask_b32 v{c.BC+i}, v30, 0, s[64:65]")
            lo, hi = lanemask(lambda l: ((i ^ l) & 1) == 0 and 4*(l >> 4) + i > (l & 15))
            e(f"s_cselect_b32 s66, 0, {lo:#x}")
            e(f"s_cselect_b32 s67, 0, {hi:#x}")
            e(f"v_cndmask_b32 v{c.BP+i}, v30, 0, s[66:67]")
        e("v_lshlrev_b32 v24, 1, v21")
        e("v_add_u32 v24, s77, v24")
        for h in range(2):
            for u in range(2):
                e(f"v_add_u32 v25, {8*h+u}, v24")
                e("v_mul_u32_u24 v25, 52, v25")
                e("v_lshrrev_b32 v25, 8, v25")
                for k, (sg, hh) in enumerate(self.COMBOS):
                    if hh == h:
                        e(f"v_cmp_eq_u32 vcc, {sg}, v25")
                        e(f"v_cndmask_b32 v{c.QM+2*k+u}, 0, -1, vcc")
        e("v_add_u32 v24, s77, v21")
        for k, th in enumerate((5, 1, 6, 2, 7, 3)):
            e(f"v_cmp_le_u32 s[{64+2*k}:{65+2*k}], {th}, v24")
        e("s_waitcnt lgkmcnt(0)")
        self.srd(44, 24, WS_BYTES)
        self.srd(48, 20, 2048 * 1280, shift=1280)
        self.srd(52, 22, 256)

    COMBOS = [(0, 0), (3, 1), (1, 0), (1, 1), (2, 0), (2, 1)]

    def stats_role(self):
        e = self.e; c = self
        e(f"""
        L_st:
        s_sub_u32 s62, s26, 6
        s_lshl_b32 s58, s62, 13
        s_sub_u32 s58, s58, s79
        s_add_u32 s58, s58, {XOFF}
        v_add_u32 v2, s58, v{c.QA}
        v_add_u32 v3, s58, v{c.QA+1}
        s_mov_b32 s57, 0x3f803f80
        s_mov_b32 s63, 0
        s_mov_b32 s56, 0
        s_mov_b32 s60, {SLOT}
        """)
        for i in range(8):
            e(f"v_mov_b32 v{40+i}, 0")
        e(f"""
        s_getreg_b32 s58, hwreg(HW_REG_XCC_ID, 0, 3)
        s_add_u32 s58, s58, 24
        s_lshl_b32 s58, 1, s58
        s_lshl_b32 s59, 1, s30
        s_or_b32 s58, s58, s59
        v_mov_b32 v11, s58
        s_lshl_b32 s59, s29, 2
        s_add_u32 s59, s59, {DBG_GRP}
        v_mov_b32 v9, s59
        """)
        e("L_st_loop:")
        e("s_barrier")
        for h in range(2):
            for m in range(4):
                e(f"ds_read_b128 v[{48+16*h+4*m}:{51+16*h+4*m}], v{2+h} offset:{m*2048}")
        e(f"""
        s_cmp_eq_u32 s26, 7
        s_cbranch_scc0 L_st_a
        s_cmp_eq_u32 s63, 0
        s_cbranch_scc0 L_st_b
        s_waitcnt vmcnt(0)
        s_mov_b64 exec, 1
        buffer_atomic_or v11, v9, s[52:55], 0 offen sc1
        s_mov_b64 exec, -1
        L_st_b:
        s_cmp_eq_u32 s63, 8
        s_cbranch_scc0 L_st_a
        buffer_load_dword v10, v9, s[52:55], 0 offen sc1
        L_st_a:
        s_add_u32 s56, s56, 1
        s_cmp_eq_u32 s56, 4
        s_cselect_b32 s58, {(-3*SLOT) & 0xffffffff:#x}, s60
        s_cselect_b32 s56, 0, s56
        s_add_u32 s63, s63, 1
        """)
        for h in range(2):
            for m in range(4):
                e(f"s_waitcnt lgkmcnt({7 - 4*h - m})")
                for q in range(4):
                    r = 48 + 16*h + 4*m + q
                    e(f"v_dot2c_f32_bf16 v{40+m}, s57, v{r}")
                    e(f"v_dot2c_f32_bf16 v{44+m}, v{r}, v{r}")
        e("v_add_u32 v2, s58, v2")
        e("v_add_u32 v3, s58, v3")
        e("s_cmp_lt_u32 s63, 10")
        e("s_cbranch_scc1 L_st_loop")
        for b in (40, 44):
            e(f"v_permlane32_swap_b32 v{b}, v{b+2}")
            e(f"v_permlane32_swap_b32 v{b+1}, v{b+3}")
        for b in (40, 44):
            e(f"v_add_f32 v{b}, v{b}, v{b+2}")
            e(f"v_add_f32 v{b+1}, v{b+1}, v{b+3}")
        for b in (40, 44):
            e(f"v_permlane16_swap_b32 v{b}, v{b+1}")
        for b in (40, 44):
            e(f"v_add_f32 v{b}, v{b}, v{b+1}")
        self.ln_scalars(40, 44, 41, 42, 43)
        e(f"""
        v_rcp_f32 v42, v42
        v_sub_f32 v41, 0, v41
        s_lshl_b32 s58, s62, 8
        v_lshl_add_u32 v43, v0, 2, s58
        v_add_u32 v43, {NEGM}, v43
        ds_write_b32 v43, v41
        ds_write_b32 v43, v42 offset:{RSTD-NEGM}
        s_waitcnt lgkmcnt(0)
        s_barrier
        s_cmp_eq_u32 s26, 7
        s_cbranch_scc0 L_pre_att
        """)
        e(f"""
        s_mov_b32 s63, 0
        L_grp:
        s_waitcnt vmcnt(0)
        v_readfirstlane_b32 s58, v10
        s_and_b32 s59, s58, 0x3ff
        s_cmp_eq_u32 s59, 0x3ff
        s_cbranch_scc1 L_grp_ok
        s_add_u32 s63, s63, 1
        s_cmp_ge_u32 s63, {SPIN}
        s_cbranch_scc1 L_grp_ok
        buffer_load_dword v10, v9, s[52:55], 0 offen sc1
        s_branch L_grp
        L_grp_ok:
        s_lshr_b32 s59, s58, 24
        s_bcnt1_i32_b32 s78, s59
        """)
        if self.force_remote:
            e("s_mov_b32 s78, 2")
        e("""
        s_cmp_eq_u32 s78, 1
        s_cbranch_scc1 L_grp_done
        """)
        self.prefill(" sc1")
        e(f"""
        s_waitcnt vmcnt(0)
        s_add_u32 s58, s30, 10
        s_lshl_b32 s58, 1, s58
        v_mov_b32 v8, s58
        s_mov_b64 exec, 1
        buffer_atomic_or v8, v9, s[52:55], 0 offen sc1
        s_mov_b64 exec, -1
        s_mov_b32 s63, 0
        L_grp2:
        buffer_load_dword v10, v9, s[52:55], 0 offen sc1
        s_add_u32 s63, s63, 1
        s_waitcnt vmcnt(0)
        v_readfirstlane_b32 s58, v10
        s_cmp_ge_u32 s63, {SPIN}
        s_cbranch_scc1 L_grp_done
        s_and_b32 s59, s58, 0xffc00
        s_cmp_eq_u32 s59, 0xffc00
        s_cbranch_scc0 L_grp2
        L_grp_done:
        v_mov_b32 v8, s78
        v_mov_b32 v9, {INFO}
        ds_write_b32 v9, v8
        s_waitcnt lgkmcnt(0)
        s_barrier
        s_branch L_w7
        """)

    def mfma_role(self):
        e = self.e; c = self
        ACC = 32
        WF = 116
        XF = 140
        acc = lambda m, a: ACC + (m*3 + a)*4
        e(f"""
        L_mf:
        s_sub_u32 s58, {XOFF}, s79
        v_add_u32 v2, s58, v{c.QA}
        v_add_u32 v3, s58, v{c.QA+1}
        v_bfe_u32 v5, v0, 2, 2
        v_lshl_add_u32 v6, v21, 3, v5
        v_lshlrev_b32 v6, 7, v6
        v_lshrrev_b32 v5, 1, v5
        v_and_b32 v7, 1, v21
        v_lshl_add_u32 v5, v7, 1, v5
        v_xor_b32 v5, s26, v5
        v_lshl_add_u32 v6, v5, 5, v6
        v_and_b32 v5, 3, v0
        v_lshl_add_u32 v4, v5, 3, v6
        s_lshl_b32 s58, s26, 5
        v_subrev_u32 v8, s79, v{c.XA}
        v_xor_b32 v8, s58, v8
        v_bfe_u32 v5, v20, 1, 2
        v_xor_b32 v5, s26, v5
        v_lshlrev_b32 v5, 5, v5
        v_lshl_add_u32 v5, v20, 7, v5
        v_lshrrev_b32 v6, 1, v21
        v_lshrrev_b32 v9, 3, v20
        v_xor_b32 v6, v6, v9
        v_lshl_add_u32 v5, v6, 4, v5
        v_lshl_add_u32 v9, v7, 3, v5
        v_lshlrev_b32 v10, 2, v20
        v_add_u32 v10, {NEGM}, v10
        s_mov_b32 s63, 0
        s_mov_b32 s56, 0
        s_mov_b32 s60, {SLOT}
        """)
        for i in range(84):
            e(f"v_mov_b32 v{ACC+i}, 0")
        def rd(h):
            r = []
            for a in range(3):
                for u in range(2):
                    b = WF + 12*h + 4*a + 2*u
                    r.append(f"ds_read_b64_tr_b16 v[{b}:{b+1}], v4 offset:{a*8192 + h*4096 + u*512}")
            for m in range(7):
                b = XF + 28*h + 4*m
                r.append(f"ds_read_b128 v[{b}:{b+3}], v{2+h} offset:{m*2048}")
            return r
        e("L_mf_loop:")
        e("s_barrier")
        for x in rd(0): e(x)
        e(f"""
        s_add_u32 s56, s56, 1
        s_cmp_eq_u32 s56, 4
        s_cselect_b32 s58, {(-3*SLOT) & 0xffffffff:#x}, s60
        s_cselect_b32 s56, 0, s56
        s_add_u32 s63, s63, 1
        """)
        r1 = rd(1); issued = 0
        for m in range(7):
            e(f"s_waitcnt lgkmcnt({6 - m + issued})")
            for a in range(3):
                e(f"v_mfma_f32_16x16x32_bf16 v[{acc(m,a)}:{acc(m,a)+3}], v[{WF+4*a}:{WF+4*a+3}], v[{XF+4*m}:{XF+4*m+3}], v[{acc(m,a)}:{acc(m,a)+3}]")
                if a < 2 and issued < 13:
                    e(r1[issued]); issued += 1
        e("v_add_u32 v2, s58, v2")
        e("v_add_u32 v3, s58, v3")
        e("v_add_u32 v4, s58, v4")
        for m in range(7):
            e(f"s_waitcnt lgkmcnt({6 - m})")
            for a in range(3):
                e(f"v_mfma_f32_16x16x32_bf16 v[{acc(m,a)}:{acc(m,a)+3}], v[{WF+12+4*a}:{WF+12+4*a+3}], v[{XF+28+4*m}:{XF+28+4*m+3}], v[{acc(m,a)}:{acc(m,a)+3}]")
        e("s_cmp_lt_u32 s63, 10")
        e("s_cbranch_scc1 L_mf_loop")
        self.st(1)
        CS = 116; NM = 128; PK = 140
        for a in range(3):
            for i in range(4):
                e(f"v_mov_b32_dpp v{CS+4*a+i}, v{acc(0,a)+i} row_newbcast:0 row_mask:0xf bank_mask:0xf")
        e("s_barrier")
        for m in range(7):
            e(f"ds_read_b32 v{NM+m}, v10 offset:{m*64}")
        k = 0
        for a in range(3):
            for m in range(7):
                if a == 0: e(f"s_waitcnt lgkmcnt({6})")
                nm = NM + m; p = nm & ~1
                sel = "op_sel:[0,1,0] op_sel_hi:[1,1,1]" if nm & 1 else "op_sel_hi:[1,0,1]"
                A = acc(m, a)
                for z in range(2):
                    e(f"v_pk_fma_f32 v[{A+2*z}:{A+2*z+1}], v[{CS+4*a+2*z}:{CS+4*a+2*z+1}], v[{p}:{p+1}], v[{A+2*z}:{A+2*z+1}] {sel}")
                d = PK + 2*(k % 8); k += 1
                e(f"v_cvt_pk_bf16_f32 v{d}, v{A}, v{A+1}")
                e(f"v_cvt_pk_bf16_f32 v{d+1}, v{A+2}, v{A+3}")
                e(f"ds_write_b64 v{9 if a == 2 else 8}, v[{d}:{d+1}] offset:{(QD, KD, VD)[a] + m*2048}")

    def attention(self):
        e = self.e; c = self
        Q = 32; KC = 40; KP = 48; V = 56
        QX = 72
        S = 96
        T_ = 128
        RMT = 136
        RQ, RK, CJ = 140, 141, 144
        P = 148
        TMP = 164
        A2 = 176
        XR = 192
        e(f"""
        L_pre_att:
        s_mul_i32 s58, s29, 10
        s_add_u32 s58, s58, s30
        s_mul_i32 s58, s58, 7168
        s_lshl_b32 s59, s26, 9
        s_add_u32 s58, s58, s59
        s_add_u32 s59, s58, 3584
        s_sub_u32 s60, s58, 3584
        s_add_u32 s61, s58, 7168
        s_cmp_eq_u32 s77, 0
        s_cselect_b32 s58, {OOB}, s58
        s_cselect_b32 s60, {OOB}, s60
        s_cmp_eq_u32 s77, 4
        s_cselect_b32 s59, {OOB}, s59
        s_cselect_b32 s61, {OOB}, s61
        v_mov_b32 v2, {INFO}
        v_add_u32 v3, {NEGM}, v{c.RQ}
        v_add_u32 v4, {RSTD}, v{c.RK}
        v_add_u32 v5, {RSTD}, v{c.RK+1}
        s_waitcnt lgkmcnt(0)
        s_barrier
        """)
        self.st(2)
        for h in range(2):
            e(f"ds_read_b128 v[{Q+4*h}:{Q+4*h+3}], v{c.QA+h} offset:{QD}")
        for h in range(2):
            e(f"ds_read_b128 v[{KC+4*h}:{KC+4*h+3}], v{c.QA+h} offset:{KD}")
            e(f"ds_read_b128 v[{KP+4*h}:{KP+4*h+3}], v{c.QA+h} offset:{KD-2048}")
        e(f"ds_read_b32 v6, v2")
        e(f"ds_read_b32 v{RQ}, v3 offset:{RSTD-NEGM}")
        e(f"ds_read_b32 v{RK}, v4")
        e(f"ds_read_b32 v{RK+1}, v5")
        e(f"ds_read_b32 v7, v3")
        e("s_waitcnt lgkmcnt(9)")
        def qmask(k):
            sg, h = self.COMBOS[k]
            for i in range(4):
                e(f"v_and_b32 v{QX+4*k+i}, v{Q+4*h+i}, v{c.QM+2*k+(i>>1)}")
        def smm(k, first):
            sg, h = self.COMBOS[k]
            for kb, z, bias in ((KC, 0, c.BC), (KP, 1, c.BP)):
                d = S + 8*sg + 4*z
                ci = bias if first else d
                e(f"v_mfma_f32_16x16x32_bf16 v[{d}:{d+3}], v[{kb+4*h}:{kb+4*h+3}], v[{QX+4*k}:{QX+4*k+3}], v[{ci}:{ci+3}]")
        def sel(sg):
            for jx in range(2):
                b = S + 8*sg + 2*jx
                e(f"v_max3_f32 v{T_+2*sg+jx}, v{b}, v{b+1}, v{b+4}")
            for jx in range(2):
                b = S + 8*sg + 2*jx
                e(f"v_max_f32 v{T_+2*sg+jx}, v{T_+2*sg+jx}, v{b+5}")
        qmask(0); qmask(1)
        e("s_waitcnt lgkmcnt(5)")
        smm(0, True); smm(1, True)
        qmask(2); qmask(4)
        smm(2, True); smm(4, True)
        e("s_waitcnt lgkmcnt(0)")
        e("v_readfirstlane_b32 s78, v6")
        sel(0); sel(3)
        self.xstore("sx", [f"buffer_store_dwordx2 v[{T_}:{T_+1}], v{c.L8}, s[44:47], s58 offen",
                           f"buffer_store_dwordx2 v[{T_+6}:{T_+7}], v{c.L8}, s[44:47], s59 offen"])
        qmask(3); qmask(5)
        smm(3, False); smm(5, False)
        for T in range(4):
            e(f"ds_read_b64_tr_b16 v[{V+4*T}:{V+4*T+1}], v{c.VA+T} offset:{VD-2048}")
            e(f"ds_read_b64_tr_b16 v[{V+4*T+2}:{V+4*T+3}], v{c.VA+T} offset:{VD}")
        for T in range(4):
            e(f"ds_read_b64 v[{XR+2*T}:{XR+2*T+1}], v{c.XA+T} offset:{XRES}")
        e(f"v_mul_f32 v{TMP}, 0x3ea52b5c, v{RQ}")
        e(f"v_mul_f32 v{CJ}, v{TMP}, v{RK}")
        e(f"v_mul_f32 v{CJ+1}, v{TMP}, v{RK+1}")
        e(f"buffer_load_dwordx2 v[{RMT}:{RMT+1}], v{c.L8}, s[44:47], s60 offen sc1")
        e(f"buffer_load_dwordx2 v[{RMT+2}:{RMT+3}], v{c.L8}, s[44:47], s61 offen sc1")
        sel(1); sel(2)
        def softmax(a, b):
            x, y, z = TMP, TMP+1, TMP+2
            for sg in (a, b):
                for jx in range(2):
                    e(f"v_mul_f32 v{T_+2*sg+jx}, v{T_+2*sg+jx}, v{CJ+jx}")
            e(f"v_max_f32 v{x}, v{T_+2*a}, v{T_+2*a+1}")
            e(f"v_max_f32 v{y}, v{T_+2*b}, v{T_+2*b+1}")
            def red(op, inv):
                e(f"v_permlane32_swap_b32 v{x}, v{y}")
                e(f"{op} v{x}, v{x}, v{y}")
                e(f"v_mov_b32 v{y}, v{x}")
                e(f"v_permlane16_swap_b32 v{x}, v{y}")
                e(f"{op} v{x}, v{x}, v{y}")
                if inv: e(f"v_rcp_f32 v{x}, v{x}")
                e(f"v_mov_b32 v{y}, v{x}")
                e(f"v_permlane32_swap_b32 v{x}, v{y}")
            red("v_max_f32", False)
            for sg, m in ((a, x), (b, y)):
                for jx in range(2):
                    e(f"v_sub_f32 v{T_+2*sg+jx}, v{T_+2*sg+jx}, v{m}")
            for sg in (a, b):
                for jx in range(2):
                    e(f"v_exp_f32 v{T_+2*sg+jx}, v{T_+2*sg+jx}")
            e(f"v_add_f32 v{x}, v{T_+2*a}, v{T_+2*a+1}")
            e(f"v_add_f32 v{y}, v{T_+2*b}, v{T_+2*b+1}")
            for sg in (a, b):
                for jx in range(2):
                    e(f"v_mul_f32 v{T_+2*sg+jx}, v{T_+2*sg+jx}, v{RK+jx}")
            red("v_add_f32", True)
            for sg, m in ((a, x), (b, y)):
                for jx in range(2):
                    e(f"v_mul_f32 v{T_+2*sg+jx}, v{T_+2*sg+jx}, v{m}")
            for sg in (a, b):
                e(f"v_cvt_pk_bf16_f32 v{T_+2*sg}, v{T_+2*sg}, v{T_+2*sg+1}")
            for sg in (a, b):
                for i in range(4):
                    e(f"v_perm_b32 v{P+4*sg+i}, v{T_+2*sg}, v{T_+2*sg}, v{c.SEL+i}")
        softmax(1, 2)
        PVS = [(0, 1), (1, 1), (2, 1), (1, 2), (2, 2), (3, 2), (0, 0), (1, 0), (2, 3), (3, 3)]
        O = {k: 72 + 4*i for i, k in enumerate(PVS)}
        def pv(k):
            T, sg = k
            e(f"v_mfma_f32_16x16x32_bf16 v[{O[k]}:{O[k]+3}], v[{V+4*T}:{V+4*T+3}], v[{P+4*sg}:{P+4*sg+3}], 0")
        e("s_waitcnt lgkmcnt(0)")
        for k in PVS[:6]: pv(k)
        e(f"v_add_f32 v{TMP+4}, 1.0, v{RQ}")
        e(f"v_mul_f32 v{TMP+5}, v7, v{RQ}")
        for T in range(4):
            for z in range(2):
                e(f"v_lshlrev_b32 v{A2+4*T+2*z}, 16, v{XR+2*T+z}")
                e(f"v_and_b32 v{A2+4*T+2*z+1}, 0xffff0000, v{XR+2*T+z}")
        for i in range(8):
            e(f"v_pk_fma_f32 v[{A2+2*i}:{A2+2*i+1}], v[{A2+2*i}:{A2+2*i+1}], v[{TMP+4}:{TMP+5}], v[{TMP+4}:{TMP+5}] op_sel:[0,0,1] op_sel_hi:[1,0,1]")
        def cvt(k):
            e(f"v_cvt_pk_bf16_f32 v{O[k]}, v{O[k]}, v{O[k]+1}")
            e(f"v_cvt_pk_bf16_f32 v{O[k]+1}, v{O[k]+2}, v{O[k]+3}")
        for k in PVS[:6]: cvt(k)
        self.st(3)
        e(f"""
        s_mov_b32 s63, 0
        L_sx_poll:
        s_waitcnt vmcnt(0)
        v_max3_u32 v{TMP}, v{RMT}, v{RMT+1}, v{RMT+2}
        v_max_u32 v{TMP}, v{TMP}, v{RMT+3}
        v_cmp_eq_u32 vcc, -1, v{TMP}
        s_add_u32 s63, s63, 1
        s_cmp_eq_u64 vcc, 0
        s_cbranch_scc1 L_sx_ok
        s_cmp_ge_u32 s63, {SPIN}
        s_cbranch_scc1 L_sx_ok
        buffer_load_dwordx2 v[{RMT}:{RMT+1}], v{c.L8}, s[44:47], s60 offen sc1
        buffer_load_dwordx2 v[{RMT+2}:{RMT+3}], v{c.L8}, s[44:47], s61 offen sc1
        s_branch L_sx_poll
        L_sx_ok:
        v_add_f32 v{T_}, v{T_}, v{RMT}
        v_add_f32 v{T_+1}, v{T_+1}, v{RMT+1}
        v_add_f32 v{T_+6}, v{T_+6}, v{RMT+2}
        v_add_f32 v{T_+7}, v{T_+7}, v{RMT+3}
        """)
        self.st(4)
        softmax(0, 3)
        for k in PVS[6:]: pv(k)
        OF = 32
        e(f"""
        s_mul_i32 s58, s29, 7
        s_add_u32 s58, s58, s26
        s_lshl_b32 s61, s58, 7
        s_add_u32 s61, s61, {FL_OFF}
        s_mul_i32 s58, s58, 20480
        s_add_u32 s58, s58, {OX_OFF}
        s_lshl_b32 s59, s30, 11
        s_add_u32 s60, s58, s59
        s_lshl_b32 s62, s30, 2
        s_add_u32 s62, s62, s61
        """)
        for z in range(2):
            e(f"v_cndmask_b32 v{OF+2+z}, v{O[(1,1)]+z}, v{O[(1,2)]+z}, s[68:69]")
            e(f"v_cndmask_b32 v{OF+4+z}, v{O[(2,1)]+z}, v{O[(2,2)]+z}, s[70:71]")
        for k in PVS[6:]: cvt(k)
        for z in range(2):
            e(f"v_cndmask_b32 v{OF+z}, v{O[(0,0)]+z}, v{O[(0,1)]+z}, s[64:65]")
            e(f"v_cndmask_b32 v{OF+2+z}, v{O[(1,0)]+z}, v{OF+2+z}, s[66:67]")
            e(f"v_cndmask_b32 v{OF+4+z}, v{OF+4+z}, v{O[(2,3)]+z}, s[72:73]")
            e(f"v_cndmask_b32 v{OF+6+z}, v{O[(3,2)]+z}, v{O[(3,3)]+z}, s[74:75]")
        self.xstore("ox", [f"buffer_store_dwordx4 v[{OF}:{OF+3}], v{c.L16}, s[44:47], s60 offen",
                           f"buffer_store_dwordx4 v[{OF+4}:{OF+7}], v{c.L16}, s[44:47], s60 offen offset:1024"])
        self.st(5)
        e(f"""
        v_mov_b32 v3, 1
        v_mov_b32 v4, 0
        v_lshlrev_b32 v5, 2, v0
        v_mov_b32 v6, {OOB}
        v_cmp_gt_u32 vcc, 10, v0
        v_cndmask_b32 v5, v6, v5, vcc
        s_waitcnt vmcnt(0)
        s_mov_b64 exec, 1
        """)
        self.xstore("fl", ["buffer_store_dword v3, v4, s[44:47], s62 offen"])
        e("s_mov_b64 exec, -1")
        e("s_barrier")
        e("ds_read_b96 v[8:10], v2 offset:16")
        WB = 112
        def wrd(ks):
            r = []
            hi = ks >= 14
            for T in range(4):
                for u in range(2):
                    b = WB + 16*(ks & 1) + 4*T + 2*u
                    r.append(f"ds_read_b64_tr_b16 v[{b}:{b+1}], v{c.WA+T} offset:{(ks - (14 if hi else 0))*4096 + u*2048}")
            return r
        def gmm(ks, nxt):
            for T in range(4):
                b = WB + 16*(ks & 1) + 4*T
                e(f"s_waitcnt lgkmcnt({6 if nxt else 6 - 2*T})")
                e(f"v_mfma_f32_16x16x32_bf16 v[{A2+4*T}:{A2+4*T+3}], v[{b}:{b+3}], v[{OF+4*ks}:{OF+4*ks+3}], v[{A2+4*T}:{A2+4*T+3}]")
                if nxt:
                    if ks + 1 == 14: e(f"v_add_u32 v{c.WA+T}, {14*4096}, v{c.WA+T}")
                    e(nxt[2*T]); e(nxt[2*T+1])
        e(f"buffer_load_dword v6, v5, s[44:47], s61 offen sc1")
        for x in wrd(0): e(x)
        gmm(0, wrd(1))
        gmm(1, wrd(2))
        e(f"""
        s_mov_b32 s63, 0
        L_fl_poll:
        s_waitcnt vmcnt(0)
        v_cmp_ne_u32 vcc, 0, v6
        s_add_u32 s63, s63, 1
        s_cmp_eq_u32 vcc_lo, 0x3ff
        s_cbranch_scc1 L_fl_ok
        s_cmp_ge_u32 s63, {SPIN}
        s_cbranch_scc1 L_fl_ok
        buffer_load_dword v6, v5, s[44:47], s61 offen sc1
        s_branch L_fl_poll
        L_fl_ok:
        """)
        self.st(6)
        for i in range(1, 10):
            e("s_add_u32 s59, s59, 2048")
            e("s_cmp_eq_u32 s59, 20480")
            e("s_cselect_b32 s59, 0, s59")
            e("s_add_u32 s60, s58, s59")
            e(f"buffer_load_dwordx4 v[{OF+8*i}:{OF+8*i+3}], v{c.L16}, s[44:47], s60 offen sc1")
            e(f"buffer_load_dwordx4 v[{OF+8*i+4}:{OF+8*i+7}], v{c.L16}, s[44:47], s60 offen offset:1024 sc1")
        e(f"""
        v_readfirstlane_b32 s56, v8
        v_readfirstlane_b32 s57, v9
        v_readfirstlane_b32 s62, v10
        v_lshrrev_b32 v3, 3, v0
        v_and_b32 v4, 7, v0
        v_lshrrev_b32 v5, 1, v3
        v_xor_b32 v5, v5, v4
        v_lshlrev_b32 v5, 4, v5
        v_lshl_add_u32 v5, v3, 7, v5
        v_add_u32 v11, s79, v5
        v_xor_b32 v12, 64, v11
        s_lshl_b32 s60, s26, 4
        v_add_u32 v3, s60, v3
        s_cmp_eq_u32 s29, 0
        s_cselect_b32 s60, 1, 15
        v_mul_u32_u24 v5, 1280, v3
        v_lshl_add_u32 v5, v4, 4, v5
        v_mov_b32 v6, {OOB}
        v_cmp_le_u32 vcc, s60, v3
        v_cndmask_b32 v13, v6, v5, vcc
        v_add_u32 v3, 8, v3
        v_add_u32 v5, {8*1280}, v5
        v_cmp_le_u32 vcc, s60, v3
        v_cndmask_b32 v14, v6, v5, vcc
        s_mul_i32 s60, s29, {97*1280}
        s_lshl_b32 s61, s76, 7
        s_add_u32 s60, s60, s61
        """)
        for ks in range(2, 20):
            e(f"s_waitcnt vmcnt({19 - ks})")
            gmm(ks, wrd(ks + 1) if ks < 19 else None)
        self.st(7)
        e(f"""
        s_cmp_eq_u32 s56, 0
        s_cbranch_scc1 L_noy
        s_barrier
        v_lshlrev_b32 v3, 4, v21
        v_add_u32 v3, {YBUF}, v3
        """)
        for tok, sr in ((0, 57), (1, 62)):
            e(f"""
            s_lshr_b32 s61, s{sr}, 4
            s_cmp_eq_u32 s61, s26
            s_cbranch_scc0 L_ny{tok}
            s_and_b32 s61, s{sr}, 15
            """)
            for T in range(4):
                e(f"ds_read_b128 v[{112+4*T}:{115+4*T}], v3 offset:{tok*256 + T*64}")
            e("v_cmp_eq_u32 vcc, s61, v20")
            e("s_and_saveexec_b64 s[80:81], vcc")
            e("s_waitcnt lgkmcnt(0)")
            e("s_nop 7")
            for i in range(16):
                e(f"v_add_f32 v{A2+i}, v{A2+i}, v{112+i}")
            e("s_mov_b64 exec, s[80:81]")
            e(f"L_ny{tok}:")
        e("L_noy:")
        e("s_nop 4")
        for T in range(4):
            e(f"v_cvt_pk_bf16_f32 v{A2+4*T}, v{A2+4*T}, v{A2+4*T+1}")
            e(f"v_cvt_pk_bf16_f32 v{A2+4*T+1}, v{A2+4*T+2}, v{A2+4*T+3}")
            e(f"ds_write_b64 v{c.XA+T}, v[{A2+4*T}:{A2+4*T+1}] offset:{OSCR}")
        e(f"""
        s_waitcnt lgkmcnt(0)
        ds_read_b128 v[32:35], v11 offset:{OSCR}
        ds_read_b128 v[36:39], v12 offset:{OSCR+1024}
        s_waitcnt lgkmcnt(1)
        buffer_store_dwordx4 v[32:35], v13, s[48:51], s60 offen
        s_waitcnt lgkmcnt(0)
        buffer_store_dwordx4 v[36:39], v14, s[48:51], s60 offen
        """)
        self.st(8)
        if self.stamp: e("s_waitcnt vmcnt(0)")
        e("s_branch L_fin")

    def wave7_tail(self):
        e = self.e; c = self
        e("L_w7:")
        self.st(2)
        self.poll_keys("w7", 4, 5, 6, 56, 57, 58)
        e(f"""
        s_mul_i32 s58, s29, 97
        s_cmp_eq_u32 s29, 0
        s_cselect_b32 s59, 1, 15
        s_mov_b32 s62, 0
        """)
        for k in (56, 57):
            e(f"""
            s_and_b32 s{k}, s{k}, 0x7ff
            s_sub_u32 s{k}, 2048, s{k}
            s_sub_i32 s{k}, s{k}, s58
            s_cmp_ge_i32 s{k}, s59
            s_cselect_b32 s{k}, s{k}, 0xffff
            s_cmp_lt_i32 s{k}, 112
            s_cselect_b32 s{k}, s{k}, 0xffff
            s_cselect_b32 s62, 1, s62
            """)
        e(f"""
        v_mov_b32 v8, s62
        v_mov_b32 v9, s56
        v_mov_b32 v10, s57
        v_mov_b32 v2, {INFO}
        ds_write_b96 v2, v[8:10] offset:16
        s_waitcnt lgkmcnt(0)
        s_barrier
        """)
        self.st(3)
        e(f"""
        s_cmp_eq_u32 s62, 0
        s_cbranch_scc1 L_fin
        v_mov_b32 v5, {DBG_FFN}
        s_mov_b32 s63, 0
        L_yp:
        buffer_load_dword v4, v5, s[52:55], 0 offen sc1
        s_add_u32 s63, s63, 1
        s_waitcnt vmcnt(0)
        v_readfirstlane_b32 s58, v4
        s_cmp_ge_u32 s63, {SPIN}
        s_cbranch_scc1 L_ypd
        s_cmp_ge_u32 s58, 27
        s_cbranch_scc0 L_yp
        L_ypd:
        v_mul_u32_u24 v5, 5120, v21
        v_lshl_add_u32 v5, v20, 4, v5
        s_lshl_b32 s58, s76, 8
        s_add_u32 s58, s58, {YP_OFF}
        """)
        self.st(4)
        for n in range(7):
            for tok in range(2):
                b = 32 + 28*tok + 4*n
                e(f"buffer_load_dwordx4 v[{b}:{b+3}], v5, s[44:47], s58 offen offset:{tok*2560} sc1")
            e(f"s_add_u32 s58, s58, {4*5120}")
        e(f"v_lshlrev_b32 v6, 4, v20")
        e(f"v_lshl_add_u32 v6, v21, 2, v6")
        e(f"v_add_u32 v6, {YBUF}, v6")
        e("s_waitcnt vmcnt(0)")
        for tok in range(2):
            b = 32 + 28*tok
            for n in range(1, 7):
                for i in range(4):
                    e(f"v_add_f32 v{b+i}, v{b+i}, v{b+4*n+i}")
            e(f"v_permlane32_swap_b32 v{b}, v{b+2}")
            e(f"v_permlane32_swap_b32 v{b+1}, v{b+3}")
            e(f"v_add_f32 v{b}, v{b}, v{b+2}")
            e(f"v_add_f32 v{b+1}, v{b+1}, v{b+3}")
            e(f"v_permlane16_swap_b32 v{b}, v{b+1}")
            e(f"v_add_f32 v{b}, v{b}, v{b+1}")
            e(f"ds_write_b32 v6, v{b} offset:{tok*256}")
        e("s_waitcnt lgkmcnt(0)")
        e("s_barrier")
        e("s_branch L_fin")

    def router(self):
        e = self.e
        e(f"""
        L_router:
        s_lshl_b32 s29, s27, 1
        s_add_u32 s29, s29, s28
        s_sub_u32 s29, s29, 30
        s_mul_i32 s30, s29, 147
        v_and_b32 v2, 15, v0
        v_lshlrev_b32 v2, 4, v2
        v_lshrrev_b32 v3, 4, v0
        s_lshl_b32 s56, s26, 2
        v_add_u32 v3, s56, v3
        v_add_u32 v4, s30, v3
        v_mul_u32_u24 v5, 1280, v4
        v_add_u32 v5, v5, v2
        v_mov_b32 v7, {OOB}
        v_add_u32 v6, {128*1280}, v5
        v_cmp_gt_u32 vcc, {147-128}, v3
        v_cndmask_b32 v6, v7, v6, vcc
        s_waitcnt lgkmcnt(0)
        """)
        self.srd(32, 4, 2048 * 1280)
        self.srd(36, 12, 1280)
        self.srd(52, 22, 256)
        for q in range(5):
            e(f"buffer_load_dwordx4 v[{20+4*q}:{23+4*q}], v2, s[36:39], 0 offen offset:{256*q}")
        e("s_mov_b32 s56, 0")
        for n in range(5):
            for q in range(5):
                b = 40 + 20*n + 4*q
                if n < 4:
                    e(f"buffer_load_dwordx4 v[{b}:{b+3}], v5, s[32:35], s56 offen offset:{256*q}")
                else:
                    e(f"buffer_load_dwordx4 v[{b}:{b+3}], v6, s[32:35], 0 offen offset:{256*q}")
            if n < 3: e(f"s_add_u32 s56, s56, {32*1280}")
        e("""
        s_mov_b32 s57, 0x3f803f80
        v_mov_b32 v8, 0
        v_mov_b32 v16, 0
        v_mov_b32 v17, 0
        s_waitcnt vmcnt(25)
        """)
        for i in range(20):
            e(f"v_dot2c_f32_bf16 v8, s57, v{20+i}")
        self.row_red("v_add_f32", 8)
        for n in range(5):
            e("v_mov_b32 v9, 0")
            e("v_mov_b32 v10, 0")
            e("v_mov_b32 v11, 0")
            for q in range(5):
                e(f"s_waitcnt vmcnt({24 - 5*n - q})")
                for i in range(4):
                    r = 40 + 20*n + 4*q + i
                    e(f"v_dot2c_f32_bf16 v9, s57, v{r}")
                    e(f"v_dot2c_f32_bf16 v10, v{r}, v{r}")
                    e(f"v_dot2c_f32_bf16 v11, v{20+4*q+i}, v{r}")
            for k in (8, 4, 2, 1):
                for v in (9, 10, 11):
                    e(f"v_add_f32_dpp v{v}, v{v}, v{v} row_ror:{k} row_mask:0xf bank_mask:0xf")
            self.ln_scalars(9, 10, 12, 13, 14)
            e(f"""
            v_rcp_f32 v13, v13
            v_fma_f32 v11, -v12, v8, v11
            v_mul_f32 v11, v11, v13
            v_ashrrev_i32 v12, 31, v11
            v_or_b32 v12, 0x80000000, v12
            v_xor_b32 v11, v11, v12
            v_and_b32 v11, 0xfffff800, v11
            v_add_u32 v12, {32*n}, v4
            v_sub_u32 v13, 2047, v12
            v_or_b32 v11, v11, v13
            v_max_u32 v11, 1, v11
            v_cmp_gt_u32 vcc, 2048, v12
            v_cndmask_b32 v11, 0, v11, vcc
            """)
            if n == 4:
                e(f"v_cmp_gt_u32 vcc, {147-128}, v3")
                e("v_cndmask_b32 v11, 0, v11, vcc")
            e("""
            v_min_u32 v12, v16, v11
            v_max_u32 v16, v16, v11
            v_max_u32 v17, v17, v12
            """)
        e("""
        v_lshlrev_b32 v2, 3, v3
        ds_write_b64 v2, v[16:17]
        s_waitcnt lgkmcnt(0)
        s_barrier
        s_cmp_eq_u32 s26, 0
        s_cbranch_scc0 L_fin
        v_lshlrev_b32 v2, 2, v0
        ds_read_b32 v4, v2
        s_waitcnt lgkmcnt(0)
        """)
        self.top2(4, 6, 56, 57, 58)
        e("""
        v_mov_b32 v4, s56
        v_mov_b32 v5, s57
        s_lshl_b32 s58, s29, 3
        v_mov_b32 v6, s58
        s_mov_b64 exec, 1
        buffer_store_dwordx2 v[4:5], v6, s[52:55], 0 offen sc1
        s_branch L_fin
        """)

    def ffn(self):
        e = self.e
        XN = 81920; H = XN + 4096; SIG = XN + 4608
        e(f"""
        L_ffn:
        s_cmp_ge_u32 s28, 27
        s_cbranch_scc1 L_end
        v_lshrrev_b32 v2, 3, v0
        v_and_b32 v3, 7, v0
        v_bfe_u32 v4, v0, 4, 1
        s_and_b32 s56, s26, 1
        s_lshl_b32 s56, s56, 1
        v_or_b32 v4, s56, v4
        v_xor_b32 v4, v4, v3
        v_lshlrev_b32 v4, 4, v4
        v_mul_u32_u24 v10, 3456, v2
        v_add_u32 v10, v10, v4
        v_xor_b32 v4, 64, v4
        v_mul_u32_u24 v11, 3456, v2
        v_add_u32 v11, v11, v4
        s_mul_i32 s57, s26, {8*3456}
        s_lshl_b32 s58, s28, 7
        s_add_u32 s57, s57, s58
        s_lshl_b32 s56, s26, 10
        s_waitcnt lgkmcnt(0)
        """)
        self.srd(32, 14, 640 * 3456)
        self.srd(36, 16, 640 * 3456)
        for reg in range(2):
            for n in range(5):
                e(f"s_add_u32 m0, s56, {reg*81920 + n*8192}")
                e("s_nop 0")
                e("buffer_load_dwordx4 v10, s[32:35], s57 offen nt lds")
                e(f"s_add_u32 m0, s56, {reg*81920 + 40960 + n*8192}")
                e("s_nop 0")
                e("buffer_load_dwordx4 v11, s[36:39], s57 offen nt lds")
                e(f"s_add_u32 s57, s57, {64*3456}")
        self.srd(40, 18, 1728 * 1280)
        self.srd(44, 24, WS_BYTES)
        self.srd(48, 4, 2048 * 1280)
        self.srd(52, 22, 256)
        e(f"""
        v_lshrrev_b32 v21, 4, v0
        v_and_b32 v20, 15, v0
        v_bfe_u32 v2, v0, 2, 2
        v_lshl_add_u32 v3, v21, 3, v2
        v_bfe_u32 v5, v0, 1, 1
        v_lshrrev_b32 v6, 1, v2
        v_and_b32 v7, 1, v21
        v_lshl_or_b32 v6, v7, 1, v6
        v_lshl_or_b32 v6, v5, 2, v6
        v_xor_b32 v6, s26, v6
        v_lshlrev_b32 v6, 4, v6
        v_lshl_add_u32 v6, v3, 7, v6
        v_and_b32 v8, 1, v0
        v_lshl_add_u32 v6, v8, 3, v6
        v_mul_u32_u24 v8, 40960, v5
        v_add_u32 v12, v6, v8
        v_add_u32 v13, 81920, v12
        v_lshl_or_b32 v6, v7, 2, v2
        v_xor_b32 v6, s26, v6
        v_lshlrev_b32 v6, 5, v6
        v_lshl_add_u32 v6, v3, 8, v6
        v_and_b32 v8, 3, v0
        v_lshl_add_u32 v14, v8, 3, v6
        v_add_u32 v15, 65536, v14
        s_and_b32 s58, s26, 2
        s_lshl_b32 s58, s58, 1
        v_or_b32 v6, s58, v21
        v_lshlrev_b32 v6, 1, v6
        v_xor_b32 v6, v6, v20
        v_lshlrev_b32 v6, 4, v6
        v_mul_u32_u24 v16, 1280, v21
        v_add_u32 v16, v16, v6
        s_waitcnt vmcnt(10)
        s_barrier
        """)
        WG = 40
        def frd(reg):
            for k in range(10):
                for u in range(2):
                    b = WG + 40*reg + 4*k + 2*u
                    e(f"ds_read_b64_tr_b16 v[{b}:{b+1}], v{12+reg} offset:{k*4096 + u*512}")
                if k == 5: e("s_waitcnt lgkmcnt(4)")
            e("s_waitcnt lgkmcnt(0)")
        frd(0)
        e("s_barrier")
        self.st(1)
        e(f"""
        s_cmp_ge_u32 s26, 4
        s_cbranch_scc0 L_f_nod
        s_sub_u32 s56, s26, 4
        s_mul_i32 s57, s28, 64
        s_lshl_b32 s58, s56, 2
        s_add_u32 s57, s57, s58
        s_mul_i32 s57, s57, 1280
        s_lshl_b32 s56, s56, 10
        """)
        for n in range(4):
            for seg in range(5):
                e(f"s_add_u32 m0, s56, {seg*16384 + n*4096 - seg*256}")
                e("s_nop 0")
                off = f" offset:{seg*256}" if seg else ""
                e(f"buffer_load_dwordx4 v16, s[40:43], s57 offen{off} nt lds")
            e(f"s_add_u32 s57, s57, {16*1280}")
        e("""
        s_waitcnt vmcnt(20)
        s_branch L_f_d
        L_f_nod:
        s_waitcnt vmcnt(0)
        L_f_d:
        s_barrier
        """)
        frd(1)
        e("s_barrier")
        self.st(2)
        e("s_cmp_ge_u32 s26, 2")
        e("s_cbranch_scc1 L_f_x")
        self.poll_keys("f", 4, 5, 6, 56, 57, 58)
        self.st(3)
        e(f"""
        s_cmp_eq_u32 s26, 0
        s_cselect_b32 s56, s56, s57
        s_and_b32 s57, s56, 0x7ff
        s_sub_u32 s57, 2047, s57
        s_mul_i32 s57, s57, 1280
        v_lshlrev_b32 v5, 2, v0
        """)
        for q in range(5):
            e(f"buffer_load_dword v{24+q}, v5, s[48:51], s57 offen offset:{256*q}")
        e(f"""
        s_and_b32 s56, s56, 0xfffff800
        s_or_b32 s56, s56, 0x400
        s_ashr_i32 s58, s56, 31
        s_not_b32 s58, s58
        s_or_b32 s58, s58, 0x80000000
        s_xor_b32 s56, s56, s58
        v_mov_b32 v6, s56
        """)
        self.rbf(6, 6)
        e(f"""
        v_mul_f32 v6, 0xbfb8aa3b, v6
        v_exp_f32 v6, v6
        v_add_f32 v6, 1.0, v6
        v_rcp_f32 v6, v6
        """)
        self.rbf(6, 6)
        e(f"""
        s_lshl_b32 s58, s26, 2
        s_add_u32 s58, s58, {SIG}
        v_mov_b32 v7, s58
        ds_write_b32 v7, v6
        s_mov_b32 s59, 0x3f803f80
        v_mov_b32 v9, 0
        v_mov_b32 v10, 0
        s_waitcnt vmcnt(0)
        """)
        for q in range(5):
            e(f"v_dot2c_f32_bf16 v9, s59, v{24+q}")
            e(f"v_dot2c_f32_bf16 v10, v{24+q}, v{24+q}")
        for k in (8, 4, 2, 1):
            for v in (9, 10):
                e(f"v_add_f32_dpp v{v}, v{v}, v{v} row_ror:{k} row_mask:0xf bank_mask:0xf")
        e("""
        v_permlane32_swap_b32 v9, v10
        v_add_f32 v9, v9, v10
        v_mov_b32 v10, v9
        v_permlane16_swap_b32 v9, v10
        v_add_f32 v9, v9, v10
        v_mov_b32 v10, v9
        v_permlane32_swap_b32 v9, v10
        """)
        self.ln_scalars(9, 10, 17, 18, 19)
        e("v_rcp_f32 v18, v18")
        e("s_mul_i32 s58, s26, 1280")
        e(f"s_add_u32 s58, s58, {XN}")
        e("v_add_u32 v5, s58, v5")
        for q in range(5):
            e(f"""
            v_lshlrev_b32 v30, 16, v{24+q}
            v_and_b32 v31, 0xffff0000, v{24+q}
            v_sub_f32 v30, v30, v17
            v_sub_f32 v31, v31, v17
            v_cvt_pk_bf16_f32 v31, v30, v31
            v_lshlrev_b32 v30, 16, v31
            v_and_b32 v31, 0xffff0000, v31
            v_mul_f32 v30, v30, v18
            v_mul_f32 v31, v31, v18
            v_cvt_pk_bf16_f32 v{32+q}, v30, v31
            ds_write_b32 v5, v{32+q} offset:{256*q}
            """)
        e(f"""
        L_f_x:
        v_and_b32 v2, 1, v0
        v_mul_u32_u24 v3, 1280, v2
        v_lshl_add_u32 v3, v21, 4, v3
        v_add_u32 v3, {XN}, v3
        v_lshlrev_b32 v4, 7, v2
        v_lshl_add_u32 v4, v21, 4, v4
        v_add_u32 v4, {H}, v4
        v_lshlrev_b32 v5, 2, v2
        v_add_u32 v5, {SIG}, v5
        s_waitcnt lgkmcnt(0)
        s_barrier
        """)
        self.st(4)
        XB = 120
        for k in range(20):
            e(f"ds_read_b128 v[{XB+4*k}:{XB+4*k+3}], v3 offset:{64*k}")
            if k >= 8:
                kk = k - 8
                e("s_waitcnt lgkmcnt(8)")
                e(f"v_mfma_f32_16x16x32_bf16 v[24:27], v[{WG+4*kk}:{WG+4*kk+3}], v[{XB+4*kk}:{XB+4*kk+3}], {'0' if kk == 0 else 'v[24:27]'}")
        for kk in range(12, 20):
            e(f"s_waitcnt lgkmcnt({19-kk})")
            e(f"v_mfma_f32_16x16x32_bf16 v[24:27], v[{WG+4*kk}:{WG+4*kk+3}], v[{XB+4*kk}:{XB+4*kk+3}], v[24:27]")
        e("ds_read_b32 v22, v5")
        for i in range(4):
            self.rbf(24+i, 24+i)
        for i in range(4):
            e(f"v_mov_b32 v{28+i}, v{24+i}")
        for i in range(4):
            e(f"v_permlane32_swap_b32 v{24+i}, v{28+i}")
        for i in range(4):
            e(f"v_mul_f32 v{32+i}, 0xbfb8aa3b, v{24+i}")
        for i in range(4):
            e(f"v_exp_f32 v{32+i}, v{32+i}")
        for i in range(4):
            e(f"v_add_f32 v{32+i}, 1.0, v{32+i}")
        for i in range(4):
            e(f"v_rcp_f32 v{32+i}, v{32+i}")
        for i in range(4):
            e(f"v_mul_f32 v{24+i}, v{24+i}, v{32+i}")
        for i in range(4):
            self.rbf(24+i, 24+i)
        for i in range(4):
            e(f"v_mul_f32 v{24+i}, v{24+i}, v{28+i}")
        e(f"""
        v_cvt_pk_bf16_f32 v24, v24, v25
        v_cvt_pk_bf16_f32 v25, v26, v27
        v_lshlrev_b32 v6, 7, v2
        v_and_b32 v7, 1, v21
        v_lshl_add_u32 v6, v7, 3, v6
        s_lshl_b32 s58, s26, 4
        s_add_u32 s58, s58, {H}
        v_add_u32 v6, s58, v6
        ds_write_b64 v6, v[24:25]
        s_waitcnt vmcnt(0) lgkmcnt(0)
        s_barrier
        """)
        self.st(5)
        e("ds_read_b128 v[24:27], v4")
        e("ds_read_b128 v[28:31], v4 offset:64")
        for seg in range(5):
            for k in range(2):
                for u in range(2):
                    b = WG + 8*seg + 4*k + 2*u
                    a, off = (14, seg*16384) if seg < 4 else (15, 0)
                    e(f"ds_read_b64_tr_b16 v[{b}:{b+1}], v{a} offset:{off + k*8192 + u*1024}")
            if seg == 2: e("s_waitcnt lgkmcnt(4)")
        e(f"""
        v_mul_u32_u24 v6, 2560, v20
        v_lshl_add_u32 v6, v21, 4, v6
        v_mov_b32 v7, {OOB}
        v_cmp_gt_u32 vcc, 2, v20
        v_cndmask_b32 v6, v7, v6, vcc
        s_mul_i32 s58, s28, 5120
        s_lshl_b32 s59, s26, 6
        s_add_u32 s58, s58, s59
        s_add_u32 s58, s58, {YP_OFF}
        s_waitcnt lgkmcnt(0)
        """)
        for k in range(2):
            for seg in range(5):
                d = XB + 4*seg; b = WG + 8*seg + 4*k
                e(f"v_mfma_f32_16x16x32_bf16 v[{d}:{d+3}], v[{b}:{b+3}], v[{24+4*k}:{27+4*k}], {'0' if k == 0 else f'v[{d}:{d+3}]'}")
        for seg in range(5):
            d = XB + 4*seg
            for i in range(4):
                e(f"v_mul_f32 v{d+i}, v{d+i}, v22")
            e(f"buffer_store_dwordx4 v[{d}:{d+3}], v6, s[44:47], s58 offen offset:{seg*512} sc1")
        e(f"""
        s_waitcnt vmcnt(0)
        s_barrier
        s_cmp_eq_u32 s26, 0
        s_cbranch_scc0 L_fin
        v_mov_b32 v4, 1
        v_mov_b32 v5, {DBG_FFN}
        s_mov_b64 exec, 1
        buffer_atomic_add v4, v5, s[52:55], 0 offen sc1
        """)


if __name__ == "__main__":
    import argparse
    ap = argparse.ArgumentParser()
    ap.add_argument("-o", default=f"cdna_kernels/{NAME}.s")
    ap.add_argument("--stamp", action="store_true")
    ap.add_argument("--remote", action="store_true")
    ap.add_argument("--fx", type=int, default=7)
    ap.add_argument("--cx", type=int, default=11)
    ap.add_argument("--hold", type=int, default=0)
    ap.add_argument("--holdx", type=int, default=-1)
    a = ap.parse_args()
    open(a.o, "w").write(G(FX=a.fx, stamp=a.stamp, force_remote=a.remote, cx=a.cx, diag_hold=a.hold, hold_x=a.holdx).gen())
```

```python
import re

EXTRA = 0
LGCAP = 0
TRANS = ("v_exp_f32", "v_log_f32", "v_rcp_f32", "v_rsq_f32", "v_sqrt_f32", "v_sin_f32", "v_cos_f32")

def regs(tok):
    tok = tok.strip()
    tok = re.sub(r"^-|^abs\(|\)$|^\||\|$", "", tok)
    m = re.fullmatch(r"([vsa])(\d+)", tok)
    if m: return {(m.group(1), int(m.group(2)))}
    m = re.fullmatch(r"([vsa])\[(\d+):(\d+)\]", tok)
    if m: return {(m.group(1), i) for i in range(int(m.group(2)), int(m.group(3)) + 1)}
    if tok == "vcc": return {("s", "vcc")}
    if tok in ("vcc_lo", "vcc_hi"): return {("s", "vcc")}
    if tok == "m0": return {("s", "m0")}
    if tok in ("exec", "exec_lo", "exec_hi"): return {("s", "exec")}
    return set()

class Ins:
    def __init__(self, line):
        self.line = line
        s = line.split(";")[0].strip()
        self.is_ins = bool(s) and not s.endswith(":") and not s.startswith(".")
        self.op = ""; self.w = set(); self.r = set(); self.cls = "other"; self.states = 0
        self.srcC = set(); self.srcAB = set(); self.dpp = False; self.stdata = set()
        if not self.is_ins: return
        p = s.split(None, 1)
        self.op = p[0]
        rest = p[1] if len(p) > 1 else ""
        ops = [x.strip() for x in re.split(r",(?![^\[]*\])", rest)]
        if ops:
            last = ops[-1].split()
            mods = last[1:] if last else []
            if last: ops[-1] = last[0]
        else:
            mods = []
        self.mods = mods
        op = self.op
        self.states = 1
        if op == "s_nop": self.states = int(ops[0], 0) + 1
        R = [regs(o) for o in ops]
        U = lambda l: set().union(*l) if l else set()
        if op.startswith("v_mfma"):
            self.cls = "mfma"; self.w = R[0]; self.srcAB = R[1] | R[2]; self.srcC = R[3]; self.r = self.srcAB | self.srcC
        elif op.startswith("v_"):
            self.cls = "valu"
            self.dpp = "_dpp" in op or any(m.startswith("row_") or m.startswith("quad_perm") for m in mods)
            if op.startswith("v_permlane"):
                self.w = R[0] | R[1]; self.r = R[0] | R[1]
            elif op.startswith("v_cmp"):
                self.w = R[0]; self.r = U(R[1:])
            elif op.startswith(("v_add_co", "v_sub_co", "v_addc_co", "v_subb_co")):
                self.w = R[0] | R[1]; self.r = U(R[2:])
            else:
                self.w = R[0]; self.r = U(R[1:])
                if op.startswith(("v_fmac", "v_dot2c", "v_writelane")) or self.dpp: self.r |= R[0]
        elif op.startswith("ds_"):
            self.cls = "ds"
            if op.startswith(("ds_read", "ds_bpermute", "ds_permute", "ds_swizzle")):
                self.w = R[0]; self.r = U(R[1:])
            else:
                self.r = U(R)
        elif op.startswith(("buffer_", "global_")):
            self.cls = "vmem"
            lds = "lds" in mods
            if lds:
                self.r = U(R) | {("s", "m0")}; self.ldsdma = True
            elif "_load" in op:
                self.w = R[0]; self.r = U(R[1:])
            elif "_atomic" in op:
                self.r = U(R)
                if "sc0" in mods: self.w = R[0]
            else:
                self.r = U(R)
                if op.endswith(("x3", "x4")):
                    self.stdata = R[0] if op.startswith("buffer_") else R[1]
        elif op.startswith(("s_load", "s_buffer_load", "s_memtime", "s_memrealtime")):
            self.cls = "smem"; self.w = R[0]; self.r = U(R[1:])
        elif op.startswith("s_"):
            self.cls = "salu"
            if op.startswith(("s_cmp", "s_bitcmp", "s_cbranch", "s_branch", "s_waitcnt", "s_barrier", "s_nop", "s_endpgm", "s_setprio", "s_sleep")):
                self.r = U(R)
            else:
                self.w = R[0] if R else set(); self.r = U(R[1:])
                if "saveexec" in op: self.w |= {("s", "exec")}

def need(p, c):
    n = 0
    pv = {x for x in p.w if x[0] in "va"}; ps = {x for x in p.w if x[0] == "s"}
    if p.cls == "valu":
        isdot = p.op.startswith("v_dot")
        if c.cls == "mfma" and pv & c.r: n = max(n, 3 if isdot else 2)
        if c.cls == "valu":
            if c.dpp and pv & c.r: n = max(n, 2)
            if c.op.startswith("v_permlane") and pv & c.r: n = max(n, 2)
            if c.op.startswith(("v_readlane", "v_readfirstlane")) and pv & c.r: n = max(n, 1)
            if p.op in TRANS or p.op.replace("_e32", "").replace("_e64", "") in TRANS:
                if pv & c.r: n = max(n, 1)
            if ps & c.r: n = max(n, 4 if c.op.startswith(("v_readlane", "v_writelane")) else 2)
            if isdot and pv & (c.r | c.w):
                same_acc = c.op == p.op and c.op.startswith("v_dot2c") and (pv & c.w)
                if not same_acc: n = max(n, 3)
        if isdot and c.cls in ("ds", "vmem") and pv & c.r: n = max(n, 3)
        if c.cls == "vmem" and ps & c.r: n = max(n, 5)
        if c.cls in ("salu", "smem") and ps & c.r: n = max(n, 1)
    if p.cls == "mfma":
        big = "32x32" in p.op
        if c.cls == "mfma":
            if p.w & c.srcAB: n = max(n, 12 if big else 8)
            if p.w & c.srcC and not (p.w == c.srcC and p.op == c.op): n = max(n, 10 if big else 6)
            if p.w & c.w and not (p.w == c.srcC): n = max(n, 10 if big else 6)
        elif c.cls in ("valu", "ds", "vmem"):
            if p.w & (c.r | c.w): n = max(n, (12 if big else 8) + EXTRA + (4 if c.cls == "valu" and (c.dpp or c.op.startswith("v_permlane")) else 0))
            if c.cls == "valu" and p.srcC & c.w: n = max(n, 7 if big else 3)
    if p.cls == "salu" and ("s", "m0") in p.w and c.cls == "vmem" and ("s", "m0") in c.r: n = max(n, 1)
    if p.cls == "vmem" and p.stdata and (p.stdata & c.w): n = max(n, 2)
    return n

def pad(lines):
    out = []; hist = []
    lg = 0
    for line in lines:
        ins = Ins(line)
        if ins.is_ins:
            if LGCAP:
                m = re.search(r"lgkmcnt\((\d+)\)", line)
                if ins.op == "s_waitcnt" and m: lg = min(lg, int(m.group(1)))
                if ins.cls == "ds":
                    if lg >= LGCAP:
                        w = Ins(f"s_waitcnt lgkmcnt({LGCAP - 1})"); out.append("    " + w.line + "   ; cap"); hist.append(w); lg = LGCAP - 1
                    lg += 1
            dist = 0; req = 0
            for p in reversed(hist):
                k = need(p, ins) - dist
                if k > req: req = k
                dist += p.states
                if dist >= 30: break
            while req > 0:
                k = min(req, 16)
                nop = Ins(f"s_nop {k-1}")
                out.append("    " + nop.line + "   ; hz"); hist.append(nop); req -= k
            hist.append(ins)
            if len(hist) > 60: hist = hist[-40:]
            out.append("    " + line)
        else:
            out.append(line)
    return out
```

```python
import sys
from hz import pad

NAME = "parallel_sum__sliding_local_dilated__moe_arch_mod__prompt"

HDR = """; Kernarg layout for this problem (88 bytes, ptrs only, base s[0:1]):
; @launch grid=(256,1,1) block=(512,1,1) lds=163840
"""

SLOT = 38912
XOFF = 24576
NSLOT = 3
DUMP = NSLOT * SLOT
QD, KD, VD = 0, 14336, 28672
XRES = XOFF
OSCR = 4096
WO = SLOT
MISC = 159744
NEGM, RSTD, INFO, YBUF = MISC, MISC + 512, MISC + 1024, MISC + 1280
EXB = 21504
EX_SX = 14336
ST_OFF = 0x450000
ST2_OFF = 0x4C0000
SF_OFF = 0x530000
EP_OFF = 0x540000
FL_OFF = 0x548000
YP_OFF = 0x550000
WS_BYTES = YP_OFF + 27 * 5120
STAMP_OFF = 0x800000
OOB = 0x7FFF0000
DBG_GRP, DBG_FFN = 128, 212
SPIN = 40000
BIG = 0xF149F2CA
assert 210 * EXB <= ST_OFF and ST_OFF + 210 * 2048 <= ST2_OFF and ST2_OFF + 210 * 2048 <= SF_OFF
assert SF_OFF + 21 * 2048 <= EP_OFF and EP_OFF + 42 * 128 <= FL_OFF and FL_OFF + 147 * 128 <= YP_OFF


def lanemask(fn):
    m = 0
    for l in range(64):
        if fn(l): m |= 1 << l
    return m & 0xFFFFFFFF, m >> 32


class G:
    def __init__(self, **k):
        self.l = []
        self.FX = k.get("fx", 7); self.stamp = k.get("stamp", 0); self.force_remote = k.get("remote", False)
        self.cx = k.get("cx", 11); self.diag_hold = k.get("hold", 0); self.hold_x = k.get("holdx", -1)
        self.opt = k

    def e(self, s):
        for x in s.strip().split("\n"):
            self.l.append(x.strip())

    def srd(self, d, b, nbytes, shift=0):
        e = self.e
        if shift:
            e(f"s_sub_u32 s{d}, s{b}, {shift}")
            e(f"s_subb_u32 s{d+1}, s{b+1}, 0")
        else:
            e(f"s_mov_b64 s[{d}:{d+1}], s[{b}:{b+1}]")
        e(f"s_mov_b32 s{d+2}, {nbytes + shift}")
        e(f"s_mov_b32 s{d+3}, 0x00020000")

    def lst(self, tag, cnt, pre):
        if self.stamp != 2: return
        for k, it in enumerate((0, 1, 5, 6)):
            slot = 1 + 2*k + (0 if pre else 1)
            self.e(f"s_cmp_eq_u32 s63, {it + cnt}")
            self.e(f"s_cbranch_scc0 L_ls_{tag}_{slot}")
            self.e(f"{'s_memtime' if self.opt.get('cyc') else 's_memrealtime'} s[{82+2*slot}:{83+2*slot}]")
            self.e(f"L_ls_{tag}_{slot}:")

    def st(self, i, main=True):
        if self.diag_hold and self.opt.get("holdat") == (i if main else 100 + i):
            self.e("s_memrealtime s[82:83]")
        if i > 9 or (self.stamp == 2 and main and 0 < i < 9): return
        if self.stamp:
            self.e(f"{'s_memtime' if self.opt.get('cyc') else 's_memrealtime'} s[{82+2*i}:{83+2*i}]")

    def smask(self, d, fn):
        lo, hi = lanemask(fn)
        self.e(f"s_mov_b32 s{d}, {lo:#x}")
        self.e(f"s_mov_b32 s{d+1}, {hi:#x}")

    def rbf(self, d, s):
        self.e(f"v_cvt_pk_bf16_f32 v{d}, v{s}, v{s}")
        self.e(f"v_and_b32 v{d}, 0xffff0000, v{d}")

    def ln_scalars(self, s1, s2, mean, sd, t):
        e = self.e
        e(f"v_mul_f32 v{s1}, 0x3acccccd, v{s1}")
        e(f"v_mul_f32 v{s2}, 0x3acccccd, v{s2}")
        e(f"v_fma_f32 v{t}, -v{s1}, v{s1}, v{s2}")
        e(f"v_max_f32 v{t}, 0, v{t}")
        self.rbf(t, t)
        e(f"v_add_f32 v{t}, 0x3727c5ac, v{t}")
        self.rbf(t, t)
        e(f"v_sqrt_f32 v{t}, v{t}")
        self.rbf(mean, s1)
        self.rbf(sd, t)

    def row_red(self, op, v):
        for k in (8, 4, 2, 1):
            self.e(f"{op}_dpp v{v}, v{v}, v{v} row_ror:{k} row_mask:0xf bank_mask:0xf")

    def wave_umax(self, v, t, sd, st, rows=4):
        e = self.e
        e(f"v_mov_b32 v{t}, v{v}")
        self.row_red("v_max_u32", t)
        e(f"v_readlane_b32 s{sd}, v{t}, 0")
        if rows == 1: return
        e(f"v_readlane_b32 s{st}, v{t}, 16")
        e(f"v_readlane_b32 s{st+1}, v{t}, 32")
        e(f"v_readlane_b32 s{st+2}, v{t}, 48")
        e(f"s_max_u32 s{sd}, s{sd}, s{st}")
        e(f"s_max_u32 s{st+1}, s{st+1}, s{st+2}")
        e(f"s_max_u32 s{sd}, s{sd}, s{st+1}")

    def top2(self, v, t, k1, k2, st, rows=4):
        e = self.e
        self.wave_umax(v, t, k1, st, rows)
        e(f"v_cmp_ne_u32 vcc, s{k1}, v{v}")
        e(f"v_cndmask_b32 v{v}, 0, v{v}, vcc")
        self.wave_umax(v, t, k2, st, rows)

    def keys_addr(self, va, t):
        e = self.e
        e(f"v_lshlrev_b32 v{va}, 2, v0")
        e(f"v_cmp_gt_u32 vcc, 14, v0")
        e(f"v_mov_b32 v{t}, {OOB}")
        e(f"v_cndmask_b32 v{va}, v{t}, v{va}, vcc")

    def poll_keys(self, tag, vk, va, t, k1, k2, st):
        e = self.e
        e(f"""
        s_mov_b32 s{st}, 0
        L_pk_{tag}:
        s_waitcnt vmcnt(0)
        v_cmp_ne_u32 vcc, 0, v{vk}
        s_add_u32 s{st}, s{st}, 1
        s_cmp_eq_u32 vcc_lo, 0x3fff
        s_cbranch_scc1 L_pkd_{tag}
        s_cmp_ge_u32 s{st}, {SPIN}
        s_cbranch_scc1 L_pkd_{tag}
        buffer_load_dword v{vk}, v{va}, s[52:55], 0 offen sc1
        s_branch L_pk_{tag}
        L_pkd_{tag}:
        """)
        self.top2(vk, t, k1, k2, st, rows=1)

    def code_prefetch(self, label, sel, nlanes, vt, tag=""):
        e = self.e
        u = f"L_pf_{label}{tag}"
        e(f"s_getpc_b64 s[58:59]")
        e(f"{u}:")
        e(f"s_add_u32 s58, s58, {label}-{u}")
        e(f"s_addc_u32 s59, s59, {'-1' if self.pf_back.get(label) else '0'}")
        if sel is not None:
            e(f"s_mul_i32 s60, {sel}, {nlanes*128}")
            e(f"v_lshl_add_u32 v{vt}, v0, 7, s60")
        else:
            e(f"v_lshlrev_b32 v{vt}, 7, v0")
        if nlanes < 64:
            e(f"s_bfm_b64 exec, {nlanes}, 0")
        e(f"global_load_dword v{vt}, v{vt}, s[58:59]")
        e("s_mov_b64 exec, -1")
    pf_back = {}

    def loader_stage(self, P, sync):
        e = self.e
        n_is = 0
        xa = self.opt.get("xaux", "").replace("_", " "); wa = self.opt.get("waux", "").replace("_", " ")
        def ld(t):
            nonlocal n_is
            e(t); n_is += 1
            if n_is == P: sync()
        e("s_lshl_b32 s58, s31, 7")
        e("s_add_u32 s58, s58, s57")
        e(f"s_add_u32 m0, s56, {XOFF}")
        e("s_mov_b64 exec, s[60:61]")
        ld(f"buffer_load_dwordx4 v46, s[32:35], s58 offen {xa} lds")
        e("s_mov_b64 exec, -1")
        for n in range(1, 7):
            e("s_add_u32 m0, m0, 2048")
            e(f"s_add_u32 s58, s58, {16*1280}")
            ld(f"buffer_load_dwordx4 v46, s[32:35], s58 offen {xa} lds")
        e("s_mov_b32 m0, s56")
        e(f"s_mul_i32 s59, s31, {64*3840}")
        fill = ["s_add_u32 s63, s63, 1", "s_add_u32 s31, s31, 1", "s_cmp_eq_u32 s31, 10\ns_cselect_b32 s31, 0, s31", f"s_add_u32 s56, s56, {SLOT}",
                f"s_cmp_ge_u32 s56, {NSLOT*SLOT}\ns_cselect_b32 s19, {NSLOT*SLOT}, 0", "s_sub_u32 s56, s56, s19"]
        for n in range(4):
            for a in range(3):
                off = f" offset:{a*1280}" if a else ""
                ld(f"buffer_load_dwordx4 v47, s[36:39], s59 offen{off} {wa} lds")
                if a < 2:
                    e(f"s_add_u32 m0, m0, {8192-1280}")
                    if fill: e(fill.pop(0))
                elif n < 3:
                    e(f"s_sub_u32 m0, m0, {2*(8192-1280) - 2048}")
                    e(f"s_add_u32 s59, s59, {16*3840}")

    def wo_loads(self, lo, hi, step, thr=0):
        e = self.e
        for i in range(lo, hi, step):
            e(f"buffer_load_dwordx4 v{32 + i % 8}, s[40:43], s{64 + i // 8} offen lds")
            if i + step < hi: e(f"s_add_u32 m0, m0, {1024*step}")
            if thr: e(f"s_waitcnt vmcnt({thr})")

    def xstore(self, tag, text):
        e = self.e
        e("s_cmp_eq_u32 s78, 1")
        e(f"s_cbranch_scc0 L_xr_{tag}")
        for t in text: e(t)
        e(f"L_xd_{tag}:")
        self.cold.append((f"L_xr_{tag}", [t + " sc1" for t in text], f"L_xd_{tag}"))

    def gen(self):
        e = self.e
        self.cold = []
        kn = NAME + "_kernel"
        self.pf_back = {"L_start": True}
        e(f"""
        .amdgcn_target "amdgcn-amd-amdhsa--gfx950"
        .text
        .globl {kn}
        .p2align 8
        .type {kn},@function
        {kn}:
        L_start:
        """)
        self.st(0)
        if self.diag_hold: e("s_memrealtime s[82:83]")
        assert self.FX == 7
        e(f"""
        s_load_dwordx16 s[4:19], s[0:1], 0
        v_lshrrev_b32 v1, 6, v0
        v_and_b32 v0, 63, v0
        s_and_b32 s27, s2, 7
        v_readfirstlane_b32 s26, v1
        s_lshr_b32 s28, s2, 3
        s_cmp_eq_u32 s27, 7
        s_cbranch_scc1 L_other
        s_cmp_ge_u32 s28, 30
        s_cbranch_scc1 L_other
        s_mul_i32 s56, s28, 26
        s_lshr_b32 s56, s56, 8
        s_mul_i32 s30, s56, 10
        s_sub_u32 s30, s28, s30
        s_mul_i32 s29, s27, 3
        s_add_u32 s29, s29, s56
        s_mul_i32 s31, s27, {self.cx}
        s_lshr_b32 s31, s31, 3
        s_add_u32 s31, s31, s30
        s_cmp_ge_u32 s31, 10
        s_cselect_b32 s56, 10, 0
        s_sub_u32 s31, s31, s56
        """)
        if self.opt.get("early", 1):
            NW = self.opt.get("earlyw", 44)
            e(f"""
            s_cmp_ge_u32 s26, 6
            s_cbranch_scc1 L_noearly
            s_getpc_b64 s[62:63]
            s_mul_i32 s56, s29, 97
            s_mul_i32 s57, s26, 56
            s_add_u32 s56, s56, s57
            s_mul_i32 s57, s31, 0xc0
            s_add_u32 s57, s57, s26
            s_sub_u32 s57, s57, 2
            s_cmp_lt_u32 s26, 2
            s_cselect_b32 s56, s56, s57
            s_cselect_b32 s57, 1, 3
            s_cselect_b32 s58, s31, s30
            s_cselect_b32 s59, 56, {NW}
            s_cmp_eq_u32 s26, 5
            s_cselect_b32 s56, 0, s56
            s_cselect_b32 s57, 1, s57
            s_cselect_b32 s59, 16, s59
            v_mov_b32 v2, s56
            v_mad_u32_u24 v2, v0, s57, v2
            v_min_u32 v2, 0x7ff, v2
            v_mul_u32_u24 v2, 10, v2
            v_add_lshl_u32 v2, v2, s58, 7
            s_bfm_b64 exec, s59, 0
            s_waitcnt lgkmcnt(0)
            s_cselect_b64 s[60:61], s[62:63], s[6:7]
            s_cmp_lt_u32 s26, 2
            s_cselect_b64 s[60:61], s[4:5], s[60:61]
            global_load_dword v255, v2, s[60:61]
            s_mov_b64 exec, -1
            L_noearly:
            """)
        e(f"""
        s_load_dwordx4 s[20:23], s[0:1], 64
        s_load_dwordx2 s[24:25], s[0:1], 80
        s_sub_u32 s76, s31, 1
        s_cmp_eq_u32 s31, 0
        s_cselect_b32 s76, 9, s76
        s_cmp_lt_u32 s26, 6
        s_cbranch_scc1 L_notld
        s_xor_b32 s28, s26, 4
        """)
        e(f"""
        s_setprio 3
        s_mov_b32 s3, 3
        s_sub_u32 s62, s26, 6
        v_lshrrev_b32 v24, 3, v0
        v_and_b32 v25, 7, v0
        v_lshrrev_b32 v26, 4, v0
        s_lshl_b32 s56, s62, 2
        v_add_u32 v27, s56, v26
        v_xor_b32 v27, v27, v25
        v_mul_u32_u24 v23, 1280, v24
        v_lshl_add_u32 v46, v27, 4, v23
        v_and_b32 v27, 1, v26
        v_lshl_or_b32 v27, v27, 1, s56
        v_xor_b32 v27, v27, v25
        v_mul_u32_u24 v21, 3840, v24
        v_lshl_add_u32 v21, v27, 4, v21
        s_mul_i32 s57, s62, {8*3840}
        s_lshl_b32 s58, s30, 7
        s_add_u32 s57, s57, s58
        v_add_u32 v47, s57, v21
        s_mul_i32 s57, s29, 97
        s_lshl_b32 s58, s62, 3
        s_add_u32 s57, s57, s58
        s_mul_i32 s57, s57, 1280
        s_lshl_b32 s56, s62, 10
        s_cmp_eq_u32 s62, 0
        s_cselect_b32 s60, 0xffffff00, -1
        s_mov_b32 s61, -1
        s_mov_b32 s63, 0
        s_mov_b32 s34, {2048*1280 + 1280}
        s_mov_b32 s35, 0x00020000
        s_mov_b32 s38, {640*3840}
        s_mov_b32 s39, 0x00020000
        s_waitcnt lgkmcnt(0)
        s_sub_u32 s32, s4, 1280
        s_subb_u32 s33, s5, 0
        s_mov_b64 s[36:37], s[6:7]
        """)
        self.st(21)
        e("L_ld_loop:")
        P = self.opt.get("P", 16); PW = self.opt.get("PW", 16)
        def sync():
            e("s_cmp_eq_u32 s3, 3")
            e("s_cbranch_scc1 L_ld_first")
            e(f"s_waitcnt vmcnt({P})")
            self.lst("ld", 2, True)
            e("s_barrier")
            self.lst("ld", 2, False)
            e("L_ld_back:")
        self.loader_stage(P, sync)
        e("s_cmp_lt_u32 s63, 10")
        e("s_cbranch_scc1 L_ld_loop")
        e(f"buffer_load_dword v107, v{0 if self.opt.get('nosxt') else 40}, s[44:47], 0 offen")
        e("s_lshl_b32 s58, s62, 10")
        e(f"s_add_u32 m0, s58, {WO}")
        self.wo_loads(0, 2*PW, 2)
        e(f"s_waitcnt vmcnt({PW + 1})")
        e("s_barrier")
        self.st(1)
        e("s_setprio 0")
        e("s_mov_b32 s3, 4")
        e("s_branch L_const2")
        e("L_ld_first:")
        self.st(22)
        if self.opt.get("holdat") == 23:
            e("s_waitcnt vmcnt(18)"); self.st(23)
        if self.opt.get("holdat") == 24:
            e("s_waitcnt vmcnt(0)"); self.st(24)
        e("s_mov_b32 s3, 1")
        self.srd(40, 8, 640 * 1280)
        e(f"""
        v_lshlrev_b32 v27, 1, v26
        v_xor_b32 v27, v27, v25
        v_lshl_add_u32 v32, v27, 4, v23
        s_lshl_b32 s79, s76, 7
        s_mul_i32 s78, s62, {8*1280}
        s_add_u32 s79, s79, s78
        v_add_u32 v32, s79, v32
        s_mul_i32 s64, s30, {64*1280}
        """)
        for i in range(2, 8, 2):
            e(f"v_add_u32 v{32+i}, {i*8*1280}, v32")
        for b in range(1, 4):
            e(f"s_add_u32 s{64+b}, s{63+b}, {64*1280}")
            e(f"s_cmp_eq_u32 s{64+b}, {640*1280}")
            e(f"s_cselect_b32 s{64+b}, 0, s{64+b}")
        e(f"""
        s_mul_i32 s78, s29, 10
        s_add_u32 s78, s78, s30
        s_mul_i32 s78, s78, {EXB}
        v_lshlrev_b32 v41, 7, v0
        s_mul_i32 s79, s29, 896
        s_add_u32 s79, s79, {FL_OFF - 56*128}
        v_add_u32 v43, s79, v41
        s_cmp_eq_u32 s62, 0
        s_cselect_b32 s79, {EX_SX}, 0
        s_add_u32 s79, s79, s78
        v_add_u32 v40, s79, v41
        v_cmp_gt_u32 vcc, 56, v0
        v_cndmask_b32 v40, v43, v40, vcc
        s_mov_b64 s[44:45], s[24:25]
        s_mov_b32 s46, {WS_BYTES}
        s_mov_b32 s47, 0x00020000
        s_branch L_const
        """)
        e("""
        L_notld:
        s_mov_b32 s3, 0
        s_and_b32 s61, s28, 7
        s_xor_b32 s28, s26, 4
        s_cmp_ge_u32 s26, 4
        s_cbranch_scc1 L_aux_pre
        """)
        if not self.opt.get("early", 1):
            e("s_cmp_eq_u32 s26, 0")
            e("s_cbranch_scc0 L_const")
            self.code_prefetch("L_start", "s61", 20, 254, "m")
        self.consts()
        e("""
        s_cmp_eq_u32 s3, 4
        s_cbranch_scc1 L_a_pre
        s_cmp_eq_u32 s3, 2
        s_cbranch_scc1 L_aux
        """)
        self.mfma_role()
        self.attention()
        self.aux_role()
        self.wave7_tail()
        for lab, body, back in self.cold:
            e(f"{lab}:")
            for t in body: e(t)
            e(f"s_branch {back}")
        self.server()
        self.ffn()
        e("L_fin:")
        if self.diag_hold:
            if self.hold_x >= 0:
                e("s_and_b32 s86, s2, 7")
                e(f"s_cmp_eq_u32 s86, {self.hold_x}")
                e("s_cbranch_scc0 L_end")
            e("L_hold:")
            e("s_memrealtime s[84:85]")
            e("s_waitcnt lgkmcnt(0)")
            e("s_sub_u32 s86, s84, s82")
            e(f"s_cmp_lt_u32 s86, {self.diag_hold}")
            e("s_cbranch_scc1 L_hold")
        if self.stamp:
            self.st(9)
            e("s_waitcnt lgkmcnt(0)")
            self.srd(44, 24, 1 << 24)
            e("s_lshl_b32 s56, s2, 3")
            e("s_add_u32 s56, s56, s26")
            e("s_lshl_b32 s56, s56, 6")
            e(f"s_add_u32 s56, s56, {STAMP_OFF}")
            e("s_mov_b64 exec, -1")
            for i in range(10):
                e(f"v_mov_b32 v{4+i}, s{82+2*i}")
            e("v_mov_b32 v14, 0")
            e("v_mov_b32 v15, 0")
            e("v_mov_b32 v2, 0")
            e("s_mov_b64 exec, 1")
            for i in range(3):
                e(f"buffer_store_dwordx4 v[{4+4*i}:{7+4*i}], v2, s[44:47], s56 offen offset:{16*i}")
        e("L_end:")
        e("s_endpgm")
        e("L_code_end:")
        e(".if L_code_end - L_other < 5632")
        e(".fill (5632 - (L_code_end - L_other)) / 4, 4, 0xbf810000")
        e(".endif")
        body = pad(self.l)
        tail = f""".section .rodata,"a"
.p2align 6
.amdhsa_kernel {kn}
  .amdhsa_next_free_vgpr 256
  .amdhsa_next_free_sgpr 102
  .amdhsa_accum_offset 256
  .amdhsa_group_segment_fixed_size 0
  .amdhsa_kernarg_size 88
  .amdhsa_user_sgpr_count 2
  .amdhsa_user_sgpr_kernarg_segment_ptr 1
  .amdhsa_system_sgpr_workgroup_id_x 1
  .amdhsa_float_denorm_mode_32 3
.end_amdhsa_kernel
"""
        return HDR + "\n".join(body) + "\n" + tail

    C = 1; Gp = 2; L16 = 3; WA = 4; XA = 8; ORD = 12; OGL = 14; FLA = 16; RQ = 17
    L8 = 197; QA = 198; VA = 200; BC = 204; BP = 208; QM = 212; RK = 224; SEL = 232
    COMBOS = [(0, 0), (3, 1), (1, 0), (1, 1), (2, 0), (2, 1)]

    def consts(self):
        e = self.e
        c = self
        e(f"""
        L_const:
        s_waitcnt lgkmcnt(0)
        s_cmp_ge_u32 s30, 5
        s_cselect_b32 s77, 5, 0
        s_sub_u32 s77, s30, s77
        s_lshl_b32 s79, s28, 11
        s_add_u32 s16, s79, {DUMP}
        v_and_b32 v{c.C}, 15, v0
        v_lshrrev_b32 v{c.Gp}, 4, v0
        v_lshrrev_b32 v22, 1, v{c.C}
        v_lshlrev_b32 v23, 7, v{c.C}
        v_xor_b32 v24, v{c.Gp}, v22
        v_lshl_add_u32 v24, v24, 4, v23
        v_add_u32 v{c.QA}, s16, v24
        v_xor_b32 v{c.QA+1}, 64, v{c.QA}
        v_lshrrev_b32 v24, 1, v{c.Gp}
        v_xor_b32 v24, v24, v22
        v_lshl_add_u32 v24, v24, 4, v23
        v_and_b32 v25, 1, v{c.Gp}
        v_lshl_add_u32 v24, v25, 3, v24
        v_add_u32 v{c.XA}, s79, v24
        v_lshrrev_b32 v24, 2, v0
        v_and_b32 v25, 3, v0
        v_bfe_u32 v26, v24, 1, 2
        v_lshlrev_b32 v26, 5, v26
        v_lshl_add_u32 v26, v24, 7, v26
        v_lshl_add_u32 v27, v25, 3, v26
        v_add_u32 v{c.WA}, {WO}, v27
        v_lshrrev_b32 v28, 3, v24
        v_lshlrev_b32 v28, 4, v28
        v_xor_b32 v27, v27, v28
        v_and_b32 v28, 1, v24
        v_lshlrev_b32 v28, 3, v28
        v_xor_b32 v27, v27, v28
        v_add_u32 v{c.VA}, s16, v27
        """)
        for T in range(1, 4):
            e(f"v_xor_b32 v{c.WA+T}, {T*32}, v{c.WA}")
            e(f"v_xor_b32 v{c.VA+T}, {T*32}, v{c.VA}")
            e(f"v_xor_b32 v{c.XA+T}, {T*32}, v{c.XA}")
        e(f"""
        s_lshl_b32 s16, s28, 4
        s_mov_b32 s17, {NEGM}
        v_add_u32 v24, s16, v{c.C}
        v_lshl_add_u32 v{c.RQ}, v24, 2, s17
        v_and_b32 v25, 14, v{c.C}
        v_lshlrev_b32 v25, 2, v25
        v_lshlrev_b32 v{c.L8}, 3, v0
        v_lshlrev_b32 v{c.L16}, 4, v0
        v_mov_b32 v29, 0x0c0c0c0c
        v_mov_b32 v30, {BIG:#x}
        """)
        for en in range(8):
            e(f"v_subrev_u32 v26, {8*en}, v25")
            e("v_and_b32 v26, 63, v26")
            e(f"v_sub_u32 v26, v{c.RQ}, v26")
            e(f"v_max_i32 v{c.RK+en}, s17, v26")
        self.smask(54, lambda l: l & 1)
        for jx in range(2):
            self.smask(52, lambda l: 4*(l >> 4) + 2*jx + (l & 1) <= (l & 15))
            lo, hi = (0x0c0c0100, 0x01000c0c) if jx == 0 else (0x0c0c0302, 0x03020c0c)
            e(f"""
            v_mov_b32 v26, {lo:#x}
            v_mov_b32 v27, {hi:#x}
            v_cndmask_b32 v26, v26, v27, s[54:55]
            v_cndmask_b32 v{c.SEL+2+jx}, v29, v26, s[52:53]
            v_cndmask_b32 v{c.SEL+jx}, v26, v29, s[52:53]
            """)
        e("s_cmp_eq_u32 s28, 0")
        for i in range(4):
            lo, hi = lanemask(lambda l: ((i ^ l) & 1) == 0 and 4*(l >> 4) + i <= (l & 15))
            e(f"s_mov_b32 s52, {lo:#x}")
            if i == 0:
                e(f"s_cselect_b32 s52, {lo & 0xffff0000:#x}, s52")
            e(f"s_mov_b32 s53, {hi:#x}")
            e(f"v_cndmask_b32 v{c.BC+i}, v30, 0, s[52:53]")
            lo, hi = lanemask(lambda l: ((i ^ l) & 1) == 0 and 4*(l >> 4) + i > (l & 15))
            e(f"s_cselect_b32 s54, 0, {lo:#x}")
            e(f"s_cselect_b32 s55, 0, {hi:#x}")
            e(f"v_cndmask_b32 v{c.BP+i}, v30, 0, s[54:55]")
        e(f"v_lshl_add_u32 v24, v{c.Gp}, 1, s77")
        e("v_and_b32 v27, 1, v0")
        e("v_sub_u32 v28, v24, v27")
        e("v_add_u32 v27, v24, v27")
        for k, (sg, h) in enumerate(self.COMBOS):
            for u in range(2):
                e(f"v_add_u32 v{25+u}, {8*h+u-5*sg}, v{27+u}")
            for u in range(2):
                e(f"v_cmp_gt_u32 s[{52+2*u}:{53+2*u}], 5, v{25+u}")
            for u in range(2):
                e(f"v_cndmask_b32 v{c.QM+2*k+u}, 0, -1, s[{52+2*u}:{53+2*u}]")
        e(f"""
        v_lshrrev_b32 v24, 3, v0
        v_and_b32 v25, 7, v0
        v_xor_b32 v26, v{c.Gp}, v25
        v_lshlrev_b32 v26, 4, v26
        v_lshl_add_u32 v26, v24, 7, v26
        v_add_u32 v{c.ORD}, s79, v26
        v_xor_b32 v{c.ORD+1}, 64, v{c.ORD}
        v_add_u32 v24, s16, v24
        s_cmp_eq_u32 s29, 0
        s_cselect_b32 s18, 1, 15
        v_mul_u32_u24 v26, 1280, v24
        v_lshl_add_u32 v26, v25, 4, v26
        v_mov_b32 v27, {OOB}
        s_mov_b32 s17, 0x3ff03ff
        s_mov_b32 s53, 0
        v_cmp_le_u32 vcc, s18, v24
        v_add_u32 v24, 8, v24
        v_add_u32 v28, {8*1280}, v26
        v_cndmask_b32 v{c.OGL}, v27, v26, vcc
        v_cmp_le_u32 vcc, s18, v24
        v_lshlrev_b32 v26, 2, v{c.C}
        v_lshl_add_u32 v26, v{c.Gp}, 9, v26
        v_cndmask_b32 v{c.OGL+1}, v27, v28, vcc
        s_cmp_eq_u32 s28, 3
        s_cselect_b32 s52, 0x3ff, s17
        """)
        e(f"v_cndmask_b32 v{c.FLA}, v27, v26, s[52:53]")
        e("s_cmp_eq_u32 s3, 1")
        e("s_cbranch_scc1 L_ld_back")
        e("L_const2:")
        e(f"v_add_u32 v24, s77, v{c.Gp}")
        e("s_mov_b64 s[12:13], s[8:9]")
        for k, th in enumerate((5, 1, 6, 2, 7, 3)):
            e(f"v_cmp_le_u32 s[{64+2*k}:{65+2*k}], {th}, v24")
        self.srd(44, 24, WS_BYTES)
        self.srd(48, 20, 2048 * 1280, shift=1280)
        e(f"""
        s_mul_i32 s8, s29, {10*EXB}
        s_mul_i32 s9, s30, {EXB}
        s_lshl_b32 s5, s28, 9
        s_add_u32 s4, s8, s9
        s_add_u32 s4, s4, s5
        s_add_u32 s4, s4, {EX_SX}
        s_add_u32 s5, s4, 3584
        s_sub_u32 s6, s4, {EXB - 3584}
        s_add_u32 s7, s4, {EXB}
        s_cmp_eq_u32 s77, 0
        s_cselect_b32 s6, {OOB}, s6
        s_cmp_eq_u32 s77, 4
        s_cselect_b32 s7, {OOB}, s7
        s_mul_i32 s10, s29, 7
        s_add_u32 s10, s10, s28
        s_lshl_b32 s10, s10, 7
        s_add_u32 s10, s10, {FL_OFF}
        s_add_u32 s8, s8, s79
        s_lshl_b32 s11, s30, 2
        s_add_u32 s11, s11, s10
        s_mul_i32 s14, s29, {97*1280}
        s_lshl_b32 s15, s76, 7
        s_add_u32 s14, s14, s15
        s_add_u32 s15, s8, s9
        s_add_u32 s9, s8, {10*EXB}
        """)
        for i in range(1, 10):
            e(f"s_add_u32 s{31+i}, s{15 if i == 1 else 30+i}, {EXB}")
            e(f"s_cmp_eq_u32 s{31+i}, s9")
            e(f"s_cselect_b32 s{31+i}, s8, s{31+i}")

    def prefill(self, aux):
        e = self.e
        t = "r" if aux else "l"
        e(f"""
        s_cmp_eq_u32 s26, 4
        s_cbranch_scc0 L_pfl_{t}
        v_mov_b32 v32, -1
        v_mov_b32 v33, -1
        v_mov_b32 v34, -1
        v_mov_b32 v35, -1
        v_lshlrev_b32 v36, 4, v0
        s_mul_i32 s58, s29, 10
        s_add_u32 s58, s58, s30
        s_mul_i32 s58, s58, {EXB}
        s_add_u32 s58, s58, {EX_SX}
        s_add_u32 s59, s58, 4096
        """)
        for i in range(7):
            e(f"buffer_store_dwordx4 v[32:35], v36, s[44:47], s{58 + i//4} offen offset:{(i%4)*1024}{aux}")
        e(f"""
        s_branch L_pfd_{t}
        L_pfl_{t}:
        v_lshlrev_b32 v36, 7, v0
        v_mov_b32 v37, {OOB}
        v_cmp_gt_u32 vcc, 7, v0
        v_mov_b32 v32, 0
        s_mul_i32 s58, s29, 896
        s_lshl_b32 s59, s30, 2
        v_cndmask_b32 v36, v37, v36, vcc
        s_add_u32 s58, s58, s59
        s_add_u32 s58, s58, {FL_OFF}
        buffer_store_dword v32, v36, s[44:47], s58 offen{aux}
        L_pfd_{t}:
        """)

    def aux_role(self):
        e = self.e; c = self
        e(f"""
        L_aux_pre:
        s_mov_b32 s3, 2
        s_sub_u32 s62, s26, 4
        v_mov_b32 v32, 0x3f803f80
        v_mov_b32 v33, v32
        v_mov_b32 v34, v32
        v_mov_b32 v35, v32
        v_lshrrev_b32 v36, 3, v0
        v_min_u32 v36, 2, v36
        v_mul_u32_u24 v36, {SLOT}, v36
        v_and_b32 v37, 7, v0
        v_lshl_add_u32 v36, v37, 4, v36
        ds_write_b128 v36, v[32:35] offset:{XOFF}
        v_mov_b32 v36, {INFO}
        v_mov_b32 v37, 0
        ds_write_b32 v36, v37 offset:28
        ds_write_b32 v36, v37 offset:32
        v_mov_b64 v[48:49], 0
        v_mov_b64 v[50:51], 0
        s_mul_i32 s58, s62, {KD}
        s_add_u32 s58, s58, {DUMP + 6*2048}
        v_lshl_add_u32 v52, v0, 4, s58
        ds_write_b128 v52, v[48:51]
        ds_write_b128 v52, v[48:51] offset:1024
        v_lshrrev_b32 v38, 4, v0
        v_lshlrev_b32 v38, 4, v38
        s_lshl_b32 s58, s29, 1
        s_add_u32 s58, s58, s62
        s_lshl_b32 s58, s58, 7
        s_add_u32 s58, s58, {EP_OFF}
        s_lshl_b32 s59, s31, 7
        s_waitcnt lgkmcnt(0)
        """)
        self.srd(44, 24, WS_BYTES)
        self.srd(36, 12, 1280)
        e(f"""
        buffer_load_dword v39, v37, s[44:47], s58 offen sc1
        buffer_load_dwordx4 v[40:43], v38, s[36:39], s59 offen
        buffer_load_dwordx4 v[44:47], v38, s[36:39], s59 offen offset:64
        """)
        self.prefill("")
        e("s_branch L_const")
        e(f"""
        L_aux:
        s_lshl_b32 s58, s62, 13
        s_sub_u32 s58, s58, s79
        s_sub_u32 s58, s58, {DUMP - XOFF}
        v_add_u32 v20, s58, v{c.QA}
        v_add_u32 v21, s58, v{c.QA+1}
        s_mov_b32 s57, 0x3f803f80
        s_getreg_b32 s61, hwreg(HW_REG_XCC_ID, 0, 3)
        s_mul_i32 s59, s29, 10
        s_add_u32 s59, s59, s30
        s_lshl_b32 s59, s59, 11
        s_lshl_b32 s60, s62, 10
        s_add_u32 s59, s59, s60
        s_add_u32 s59, s59, {ST_OFF}
        s_lshl_b32 s56, s29, 11
        s_add_u32 s60, s60, s56
        s_add_u32 s60, s60, {SF_OFF}
        """)
        self.srd(52, 22, 256)
        AM = 96
        e("s_waitcnt vmcnt(0)")
        e("v_readfirstlane_b32 s56, v39")
        e("v_mov_b32 v48, s57")
        e(f"v_and_b32 v49, 3, v{c.C}")
        e(f"v_lshrrev_b32 v50, 2, v{c.C}")
        e("v_cmp_eq_u32 vcc, 0, v49")
        e("s_add_u32 s56, s56, 8")
        e("s_and_b32 s56, s56, -8")
        e("s_or_b32 s61, s61, s56")
        for i in range(8):
            e(f"v_cndmask_b32 v{40+i}, v{40+i}, v48, vcc")
        for m in range(4):
            self.smask(16, lambda l: (l & 15) in (4*m, 4*m + 1))
            for i in range(8):
                e(f"v_cndmask_b32 v{AM+8*m+i}, 0, v{40+i}, s[16:17]")
        self.smask(16, lambda l: l & 1)
        self.smask(18, lambda l: l & 2)
        e(f"v_cmp_eq_u32 vcc, v50, v{c.Gp}")
        e("s_setprio 2")
        e("s_barrier")
        for h in range(2):
            for m in range(4):
                e(f"ds_read_b128 v[{64+16*h+4*m}:{67+16*h+4*m}], v{20+h} offset:{m*2048}")
        D2 = 128
        for h in range(2):
            for m in range(4):
                r = 64 + 16*h + 4*m
                e(f"s_waitcnt lgkmcnt({7 - 4*h - m})")
                e(f"v_mfma_f32_16x16x32_bf16 v[{D2+4*m}:{D2+4*m+3}], v[{r}:{r+3}], v[{r}:{r+3}], {'0' if h == 0 else f'v[{D2+4*m}:{D2+4*m+3}]'}")
                e(f"v_mfma_f32_16x16x32_bf16 v[56:59], v[{AM+8*m+4*h}:{AM+8*m+4*h+3}], v[{r}:{r+3}], {'0' if h + m == 0 else 'v[56:59]'}")
        for m in range(4):
            d = D2 + 4*m
            e(f"v_cndmask_b32 v{d}, v{d}, v{d+1}, s[16:17]")
            e(f"v_cndmask_b32 v{d+2}, v{d+2}, v{d+3}, s[16:17]")
            e(f"v_cndmask_b32 v{d}, v{d}, v{d+2}, s[18:19]")
            e(f"v_cndmask_b32 v{52+m}, 0, v{d}, vcc")
        e("""
        v_mov_b32 v60, v56
        v_mov_b32 v62, v57
        v_permlane32_swap_b32 v52, v54
        v_permlane32_swap_b32 v53, v55
        v_add_f32 v52, v52, v54
        v_add_f32 v53, v53, v55
        v_permlane16_swap_b32 v52, v53
        v_add_f32 v61, v52, v53
        """)
        e("v_mov_b32 v63, s61")
        e(f"buffer_store_dwordx4 v[60:63], v{c.L16}, s[44:47], s59 offen")
        e(f"s_add_u32 s59, s59, {ST2_OFF - ST_OFF}")
        e(f"buffer_store_dwordx4 v[60:63], v{c.L16}, s[44:47], s59 offen sc1")
        e("s_setprio 0")
        for i in range(1, 7):
            e("s_barrier")
        e(f"buffer_load_dwordx4 v[64:67], v{c.L16}, s[44:47], s60 offen sc1")
        e(f"""
        s_lshl_b32 s58, s62, 8
        s_add_u32 s58, s58, {NEGM}
        v_lshl_add_u32 v20, v0, 2, s58
        v_mov_b32 v21, {INFO}
        s_barrier
        s_mov_b32 s63, 0
        L_sf:
        s_waitcnt vmcnt(0)
        v_cmp_ne_u32 vcc, s56, v67
        s_add_u32 s63, s63, 1
        s_cmp_eq_u64 vcc, 0
        s_cbranch_scc1 L_sf_ok
        s_cmp_ge_u32 s63, {SPIN}
        s_cbranch_scc1 L_sf_ok
        buffer_load_dwordx4 v[64:67], v{c.L16}, s[44:47], s60 offen sc1
        s_branch L_sf
        L_sf_ok:
        ds_write_b32 v20, v64
        ds_write_b32 v20, v65 offset:{RSTD-NEGM}
        ds_write_b32 v21, v66
        v_readfirstlane_b32 s78, v66
        s_cmp_eq_u32 s78, 1
        s_cbranch_scc1 L_loc
        """)
        self.prefill(" sc1")
        e(f"""
        s_lshl_b32 s59, s29, 2
        s_add_u32 s59, s59, {DBG_GRP}
        v_mov_b32 v20, s59
        v_mov_b32 v21, 1
        s_waitcnt vmcnt(0)
        s_mov_b64 exec, 1
        buffer_atomic_add v21, v20, s[52:55], 0 offen sc1
        s_mov_b64 exec, -1
        s_mov_b32 s63, 0
        L_grp2:
        buffer_load_dword v22, v20, s[52:55], 0 offen sc1
        s_add_u32 s63, s63, 1
        s_waitcnt vmcnt(0)
        v_readfirstlane_b32 s58, v22
        s_cmp_ge_u32 s63, {SPIN}
        s_cbranch_scc1 L_loc
        s_cmp_ge_u32 s58, 20
        s_cbranch_scc0 L_grp2
        L_loc:
        s_waitcnt lgkmcnt(0)
        s_barrier
        s_mul_i32 s58, s27, 3
        s_sub_u32 s58, s29, s58
        s_lshl_b32 s58, s58, 1
        s_add_u32 s58, s58, s62
        s_add_u32 s58, s58, s30
        s_add_u32 s58, s58, 4
        s_cmp_ge_u32 s58, 10
        s_cselect_b32 s59, 10, 0
        s_sub_u32 s58, s58, s59
        s_mul_i32 s58, s58, {64*1280}
        s_lshl_b32 s59, s76, 7
        s_add_u32 s58, s58, s59
        v_mul_u32_u24 v20, 1280, v0
        s_sub_u32 s59, s15, s79
        s_mul_i32 s60, s62, {28*128}
        s_add_u32 s59, s59, s60
        s_add_u32 s59, s59, {56*128}
        v_lshlrev_b32 v21, 7, v0
        """)
        self.srd(52, 12, 640 * 1280)
        e("""
        s_barrier
        s_bfm_b64 exec, 28, 0
        buffer_load_dword v107, v21, s[44:47], s59 offen
        s_mov_b64 exec, -1
        buffer_load_dword v106, v20, s[52:55], s58 offen
        s_branch L_a_pre
        """)

    def mfma_role(self):
        e = self.e; c = self
        ACC = 32
        WF = 116
        XF = 140
        acc = lambda m, a: ACC + (m*3 + a)*4
        e(f"""
        s_add_u32 s58, s79, {DUMP - XOFF}
        v_subrev_u32 v20, s58, v{c.QA}
        v_subrev_u32 v21, s58, v{c.QA+1}
        v_bfe_u32 v25, v0, 2, 2
        v_lshl_add_u32 v26, v{c.Gp}, 3, v25
        v_lshlrev_b32 v26, 7, v26
        v_lshrrev_b32 v25, 1, v25
        v_and_b32 v27, 1, v{c.Gp}
        v_lshl_add_u32 v25, v27, 1, v25
        v_xor_b32 v25, s26, v25
        v_lshl_add_u32 v26, v25, 5, v26
        v_and_b32 v25, 3, v0
        v_lshl_add_u32 v22, v25, 3, v26
        s_lshl_b32 s58, s26, 5
        s_sub_u32 s59, {DUMP}, s79
        v_xor_b32 v23, s58, v{c.XA}
        v_add_u32 v23, s59, v23
        v_and_b32 v29, 1, v0
        v_lshlrev_b32 v29, 3, v29
        v_xor_b32 v23, v23, v29
        v_bfe_u32 v25, v{c.C}, 1, 2
        v_xor_b32 v25, s26, v25
        v_lshlrev_b32 v25, 5, v25
        v_lshl_add_u32 v25, v{c.C}, 7, v25
        v_lshrrev_b32 v26, 1, v{c.Gp}
        v_lshrrev_b32 v28, 3, v{c.C}
        v_xor_b32 v26, v26, v28
        v_lshl_add_u32 v25, v26, 4, v25
        v_lshl_add_u32 v25, v27, 3, v25
        v_xor_b32 v25, v25, v29
        v_add_u32 v24, {DUMP}, v25
        v_lshlrev_b32 v25, 2, v{c.C}
        v_add_u32 v25, {NEGM}, v25
        s_mov_b32 s63, 0
        s_mov_b32 s56, 0
        s_mov_b32 s60, {SLOT}
        """)
        for i in range(42):
            e(f"v_mov_b64 v[{ACC+2*i}:{ACC+2*i+1}], 0")
        def rdw(h, a):
            b = WF + 12*h + 4*a
            return [f"ds_read_b64_tr_b16 v[{b+2*u}:{b+2*u+1}], v22 offset:{a*8192 + h*4096 + u*512}" for u in range(2)]
        def rdx(h, m):
            b = XF + 28*h + 4*m
            return f"ds_read_b128 v[{b}:{b+3}], v{20+h} offset:{m*2048}"
        def mm(h, m, a):
            e(f"v_mfma_f32_16x16x32_bf16 v[{acc(m,a)}:{acc(m,a)+3}], v[{WF+12*h+4*a}:{WF+12*h+4*a+3}], v[{XF+28*h+4*m}:{XF+28*h+4*m+3}], v[{acc(m,a)}:{acc(m,a)+3}]")
        def rds(h):
            return rdw(h, 0) + rdw(h, 1) + rdw(h, 2) + [rdx(h, m) for m in range(7)]
        def half(hm, rd, extra=()):
            rd = list(rd) + list(extra)
            for m in range(7):
                for a in range(3):
                    abl = self.opt.get("abl", 0)
                    if not (abl & 1) and not (abl & 4 and a == 2): mm(hm, m, a)
                    if rd:
                        x = rd.pop(0)
                        if not (abl & 2 and x.startswith("ds_")): e(x)
        for i in range(20):
            e(f"v_mov_b64 v[{(WF+12+2*i) if i < 6 else (XF+28+2*(i-6))}:{(WF+13+2*i) if i < 6 else (XF+29+2*(i-6))}], 0")
        e("L_mf_loop:")
        self.lst("mf", 0, True)
        e("s_barrier")
        self.lst("mf", 0, False)
        if self.opt.get("holdat") == 20:
            e("s_cmp_eq_u32 s63, 0"); e("s_cbranch_scc0 L_h20"); self.st(20); e("L_h20:")
        r0 = rds(0)
        e(r0[0]); e(r0[1])
        half(1, r0[2:], ["s_add_u32 s56, s56, 1", f"s_cmp_eq_u32 s56, {NSLOT}",
                         f"s_cselect_b32 s58, {(-(NSLOT-1)*SLOT) & 0xffffffff:#x}, s60", "s_cselect_b32 s56, 0, s56", "s_add_u32 s63, s63, 1"])
        e("s_waitcnt lgkmcnt(0)")
        half(0, rds(1), ["v_add_u32 v20, s58, v20", "v_add_u32 v21, s58, v21", "v_add_u32 v22, s58, v22", "s_cmp_lt_u32 s63, 9"])
        e("s_waitcnt lgkmcnt(0)")
        e("s_cbranch_scc1 L_mf_loop")
        CS = 236; NM = 248
        e("s_waitcnt vmcnt(0)")
        half(1, [f"ds_read_b32 v{NM+m}, v25 offset:{m*64}" for m in range(7)] + self.stat_reads())
        e("s_waitcnt lgkmcnt(0)")
        e("s_barrier")
        reads = [(t, ("w", 0, 0)) for t in rdw(0, 0)] + [(rdx(0, 0), ("x", 0, 0))]
        for a in (1, 2): reads += [(t, ("w", 0, a)) for t in rdw(0, a)]
        reads += [(rdx(1, 0), ("x", 1, 0))]
        for a in range(3): reads += [(t, ("w", 1, a)) for t in rdw(1, a)]
        for m in range(1, 7): reads += [(rdx(0, m), ("x", 0, m)), (rdx(1, m), ("x", 1, m))]
        nl = 0; pos = {}; rp = 0; done = -1; cnt = 0
        def em(t):
            nonlocal cnt, nl
            e(t); cnt += 1
            if t.startswith("ds_"): nl += 1
        def issue(n):
            nonlocal rp
            for _ in range(n):
                if rp < len(reads):
                    pos[reads[rp][1]] = nl
                    em(reads[rp][0]); rp += 1
        epi = []
        ba = [None, False]
        def emx(t):
            em(t)
            if t.endswith(f"offset:{VD + 3*2048}"): ba[0] = (nl, cnt + self.opt.get("BAD", 12))
            if ba[0] and not ba[1] and cnt >= ba[0][1]:
                em(f"s_waitcnt lgkmcnt({nl - ba[0][0]})"); em("s_barrier"); ba[1] = True
        def drain(k):
            while k > 0 and epi and epi[0][0] <= cnt:
                emx(epi.pop(0)[1]); k -= 1
        issue(14)
        for m in range(7):
            for h in range(2):
                for a in range(3):
                    needi = max(pos[("w", h, a)], pos[("x", h, m)])
                    if needi > done:
                        em(f"s_waitcnt lgkmcnt({min(15, nl - 1 - needi)})"); done = needi
                    mm(h, m, a); cnt += 1
                    if h == 1:
                        A = acc(m, a); t0 = cnt + 10
                        if m == 0:
                            t0 += 4
                            epi += [(t0, f"v_mov_b32_dpp v{CS+4*a+i}, v{A+i} row_newbcast:0 row_mask:0xf bank_mask:0xf") for i in range(4)]
                        nm = NM + m; p = nm & ~1
                        sel = "op_sel:[0,1,0] op_sel_hi:[1,1,1]" if nm & 1 else "op_sel_hi:[1,0,1]"
                        if self.opt.get("pkepi"):
                            epi += [(t0, f"v_pk_fma_f32 v[{A+2*z}:{A+2*z+1}], v[{CS+4*a+2*z}:{CS+4*a+2*z+1}], v[{p}:{p+1}], v[{A+2*z}:{A+2*z+1}] {sel}") for z in range(2)]
                        else:
                            epi += [(t0, f"v_fmac_f32 v{A+z}, v{CS+4*a+z}, v{nm}") for z in range(4)]
                        epi += [(t0, f"v_cvt_pk_bf16_f32 v{A}, v{A}, v{A+1}"), (t0, f"v_cvt_pk_bf16_f32 v{A+1}, v{A+2}, v{A+3}"),
                                (t0, f"ds_write_b64 v{24 if a == 2 else 23}, v[{A}:{A+1}] offset:{(QD, KD, VD)[a] + m*2048}")]
                    issue(1)
                    drain(self.opt.get("EK", 4))
        self.st(1)
        while epi: emx(epi.pop(0)[1])
        assert ba[1]
        e("s_cmp_eq_u32 s26, 3")
        e("s_cbranch_scc1 L_w3")
        e("s_branch L_att_go")

    RQV = 18; NMQ = 19; LOC = 31
    def stat_reads(self):
        c = self
        r = [f"v_mov_b32 v30, {INFO}", f"ds_read_b32 v{c.LOC}, v30", f"ds_read_b32 v{c.RQV}, v{c.RQ} offset:{RSTD-NEGM}", f"ds_read_b32 v{c.NMQ}, v{c.RQ}"]
        return r + [f"ds_read_b32 v{c.RK+en}, v{c.RK+en} offset:{RSTD-NEGM}" for en in range(8)]

    def attention(self):
        e = self.e; c = self
        A2 = 32; B2 = 112
        OF = 48
        WB = 128
        T_ = 48; RMT = 56; V = 60; OB = 76; QX = 76; XR = 76
        Q = 128; KC = 136; KP = 144; S = 152
        P = 236; TMP = 252; L8 = 104
        RQ, NMQ, RK = c.RQV, c.NMQ, c.RK
        pr = lambda r: f"v[{r}:{r+1}]"
        fin = "s_branch L_fin" if (self.stamp or self.diag_hold) else "s_endpgm"
        def wrd(ks):
            r = []
            for T in range(4):
                if ks == 14: r.append(f"v_add_u32 v{c.WA+T}, {14*4096}, v{c.WA+T}")
                if ks == 19: r.append(f"v_subrev_u32 v{c.WA+T}, {WO + 14*4096}, v{c.WA+T}")
                base = 0 if ks == 19 else (ks - (14 if ks >= 14 else 0))*4096
                b = WB + 16*(ks & 7) + 4*T
                r += [f"ds_read_b64_tr_b16 v[{b+2*u}:{b+2*u+1}], v{c.WA+T} offset:{base + u*2048}" for u in range(2)]
            return r
        def pre(k0, k1):
            for ks in range(k0, k1):
                for x in wrd(ks): e(x)
        def init(acc, xr, k):
            for i in range(8):
                e(f"v_lshlrev_b32 v{acc+2*i}, 16, v{xr+i}")
                e(f"v_and_b32 v{acc+2*i+1}, 0xffff0000, v{xr+i}")
                e(f"v_pk_fma_f32 v[{acc+2*i}:{acc+2*i+1}], v[{acc+2*i}:{acc+2*i+1}], v[{k}:{k+1}], v[{k+2}:{k+3}] op_sel_hi:[1,0,0]")
        e("L_a_pre:")
        for t in self.stat_reads(): e(t)
        e(f"""
        s_cmp_eq_u32 s28, 3
        s_cselect_b32 s42, 0, 0x3ff0000
        s_cselect_b32 s58, {OOB}, 0
        s_add_u32 s59, s58, 8192
        v_add_u32 v105, s59, v{c.L16}
        s_add_u32 s41, s14, {64*1280}
        s_or_b32 s41, s41, s58
        s_lshl_b32 s43, 1, s30
        s_andn2_b32 s43, 0x3ff, s43
        """)
        XI = 80
        def xreads():
            for T in range(4):
                e(f"ds_read_b64 v[{XI+2*T}:{XI+2*T+1}], v{c.XA+T} offset:{XRES}")
            e(f"ds_read_b32 v28, v{c.RQ} offset:{RSTD-NEGM+256}")
            e(f"ds_read_b32 v29, v{c.RQ} offset:256")
            for T in range(4):
                e(f"ds_read_b64 v[{XI+8+2*T}:{XI+9+2*T}], v{c.XA+T} offset:{XRES+8192}")
        def inits(rds):
            main_l = self.l; self.l = []
            e(f"v_add_f32 v24, 1.0, v{RQ}")
            e(f"v_mul_f32 v26, v{NMQ}, v{RQ}")
            init(A2, XI, 24)
            e("v_add_f32 v24, 1.0, v28")
            e("v_mul_f32 v26, v29, v28")
            init(B2, XI + 8, 24)
            w = self.l; self.l = main_l
            rds = list(rds)
            for x in w:
                e(x)
                if rds: e(rds.pop(0))
            for x in rds: e(x)
        if self.opt.get("earlyinit"):
            xreads(); e("s_waitcnt lgkmcnt(0)"); inits([])
        if self.opt.get("aprio") == 2: e("s_setprio 1")
        e("L_att_go:")
        e("s_waitcnt lgkmcnt(0)")
        e(f"v_readfirstlane_b32 s78, v{c.LOC}")
        e(f"v_mul_f32 v{TMP+2}, 0x3ea52b5c, v{RQ}")
        e(f"v_mov_b32 v{L8}, v{c.L8}")
        for tau in range(1, 5):
            e(f"s_cmp_eq_u32 s77, {tau}")
            e(f"s_cbranch_scc1 L_att{tau}")
        ld_ = [f"buffer_load_dwordx2 {pr(RMT)}, v{L8}, s[44:47], s6 offen sc1", f"buffer_load_dwordx2 {pr(RMT+2)}, v{L8}, s[44:47], s7 offen sc1"]
        for tau in range(5):
            slot_of = lambda quad: (quad + tau) // 5
            combos = [k for k, (sg, h) in enumerate(self.COMBOS) if any(slot_of(q) == sg for q in range(8*h, 8*h + 8))]
            e(f"L_att{tau}:")
            if self.opt.get("preb11"): self.st(8)
            e("s_barrier")
            self.st(2)
            for h in range(2):
                e(f"ds_read_b128 v[{Q+4*h}:{Q+4*h+3}], v{c.QA+h} offset:{QD}")
            for h in range(2):
                e(f"ds_read_b128 v[{KC+4*h}:{KC+4*h+3}], v{c.QA+h} offset:{KD}")
                e(f"ds_read_b128 v[{KP+4*h}:{KP+4*h+3}], v{c.QA+h} offset:{KD-2048}")
            e("s_waitcnt lgkmcnt(4)")
            started = set()
            def qmask(k):
                if k not in combos: return
                sg, h = self.COMBOS[k]
                for i in range(4):
                    e(f"v_and_b32 v{QX+4*k+i}, v{Q+4*h+i}, v{c.QM+2*k+(i>>1)}")
            def smm(k):
                if k not in combos: return
                sg, h = self.COMBOS[k]
                for kb, z, bias in ((KC, 0, c.BC), (KP, 1, c.BP)):
                    d = S + 8*sg + 4*z
                    ci = d if sg in started else bias
                    e(f"v_mfma_f32_16x16x32_bf16 v[{d}:{d+3}], v[{kb+4*h}:{kb+4*h+3}], v[{QX+4*k}:{QX+4*k+3}], v[{ci}:{ci+3}]")
                started.add(sg)
            def sel(sg):
                for jx in range(2):
                    b = S + 8*sg + 2*jx
                    e(f"v_max3_f32 v{T_+2*sg+jx}, v{b}, v{b+1}, v{b+4}")
                for jx in range(2):
                    b = S + 8*sg + 2*jx
                    e(f"v_max_f32 v{T_+2*sg+jx}, v{T_+2*sg+jx}, v{b+5}")
            qmask(0); qmask(1)
            e("s_waitcnt lgkmcnt(0)")
            smm(0); smm(1)
            qmask(2); qmask(5)
            st_ = []
            if tau > 0:
                sel(0); st_.append(f"buffer_store_dwordx2 {pr(T_)}, v{L8}, s[44:47], s4 offen")
            if tau < 4:
                sel(3); st_.append(f"buffer_store_dwordx2 {pr(T_+6)}, v{L8}, s[44:47], s5 offen")
            self.xstore(f"sx{tau}", st_)
            smm(2); smm(5)
            qmask(3); qmask(4)
            smm(3); smm(4)
            for t in ld_: e(t)
            for T in range(4):
                e(f"ds_read_b64_tr_b16 v[{V+4*T}:{V+4*T+1}], v{c.VA+T} offset:{VD-2048}")
                e(f"ds_read_b64_tr_b16 v[{V+4*T+2}:{V+4*T+3}], v{c.VA+T} offset:{VD}")
            if tau == 0: sel(0)
            if tau == 4: sel(3)
            if 3 in combos: sel(2); sel(1)
            else: sel(1); sel(2)
            if tau < 4: e("s_branch L_att_mid")
        e("L_att_mid:")
        self.st(3)
        e("s_mov_b32 s63, 0")
        e("s_cmp_lt_u32 s26, 4")
        e("s_cbranch_scc1 L_sx_poll")
        e("s_waitcnt vmcnt(2)")
        if self.opt.get("aprio") == 1: e("s_setprio 1")
        e("s_barrier")
        e("L_sx_poll:")
        e("s_waitcnt vmcnt(0)")
        e(f"v_max3_u32 v{TMP}, v{RMT}, v{RMT+1}, v{RMT+2}")
        e(f"v_max_u32 v{TMP}, v{TMP}, v{RMT+3}")
        e(f"v_cmp_eq_u32 vcc, -1, v{TMP}")
        e("s_cbranch_vccnz L_sx_retry")
        e("L_sx_ok:")
        self.cold.insert(0, ("L_sx_retry", ["s_add_u32 s63, s63, 1", f"s_cmp_ge_u32 s63, {SPIN}", "s_cbranch_scc1 L_sx_ok"] + ld_, "L_sx_poll"))
        self.st(4)
        e(f"v_pk_add_f32 {pr(T_)}, {pr(T_)}, {pr(RMT)}")
        e(f"v_pk_add_f32 {pr(T_+6)}, {pr(T_+6)}, {pr(RMT+2)}")
        if self.opt.get("h1"): e(f"s_nop {self.opt['h1'] - 1}")
        for j_ in range(2):
            e(f"v_permlane32_swap_b32 v{T_+j_}, v{T_+4+j_}")
        for j_ in range(2):
            e(f"v_permlane32_swap_b32 v{T_+2+j_}, v{T_+6+j_}")
        for j_ in range(2):
            e(f"v_permlane16_swap_b32 v{T_+j_}, v{T_+2+j_}")
            e(f"v_permlane16_swap_b32 v{T_+4+j_}, v{T_+6+j_}")
        for g_ in range(4):
            e(f"v_pk_mul_f32 {pr(T_+2*g_)}, {pr(T_+2*g_)}, {pr(RK+2*g_)}")
        e(f"v_max3_f32 v{TMP}, v{T_}, v{T_+1}, v{T_+2}")
        e(f"v_max3_f32 v{TMP}, v{TMP}, v{T_+3}, v{T_+4}")
        e(f"v_max3_f32 v{TMP}, v{TMP}, v{T_+5}, v{T_+6}")
        e(f"v_max_f32 v{TMP}, v{TMP}, v{T_+7}")
        e(f"v_mul_f32 v{TMP}, v{TMP}, v{TMP+2}")
        if self.opt.get("h2"): e(f"s_nop {self.opt['h2'] - 1}")
        for g_ in range(4):
            e(f"v_pk_fma_f32 {pr(T_+2*g_)}, {pr(T_+2*g_)}, {pr(TMP+2)}, {pr(TMP)} op_sel_hi:[1,0,0] neg_lo:[0,0,1] neg_hi:[0,0,1]")
        for i in range(8):
            e(f"v_exp_f32 v{T_+i}, v{T_+i}")
        e(f"v_pk_add_f32 {pr(TMP)}, {pr(T_)}, {pr(T_+2)}")
        e(f"v_pk_add_f32 {pr(TMP)}, {pr(TMP)}, {pr(T_+4)}")
        e(f"v_pk_add_f32 {pr(TMP)}, {pr(TMP)}, {pr(T_+6)}")
        e(f"v_add_f32 v{TMP}, v{TMP}, v{TMP+1}")
        e(f"v_rcp_f32 v{TMP}, v{TMP}")
        for g_ in range(4):
            e(f"v_pk_mul_f32 {pr(T_+2*g_)}, {pr(T_+2*g_)}, {pr(RK+2*g_)}")
        for g_ in range(4):
            e(f"v_pk_mul_f32 {pr(T_+2*g_)}, {pr(T_+2*g_)}, {pr(TMP)} op_sel_hi:[1,0]")
        for g_ in (0, 2, 1, 3):
            e(f"v_cvt_pk_bf16_f32 v{T_+2*g_}, v{T_+2*g_}, v{T_+2*g_+1}")
        e(f"v_permlane32_swap_b32 v{T_}, v{T_+4}")
        e("s_waitcnt lgkmcnt(0)")
        e(f"v_permlane32_swap_b32 v{T_+2}, v{T_+6}")
        e("v_mov_b32 v22, 1")
        e("v_mov_b32 v23, 0")
        e(f"v_permlane16_swap_b32 v{T_}, v{T_+2}")
        e(f"v_permlane16_swap_b32 v{T_+4}, v{T_+6}")
        def perm(sg):
            for i in range(4):
                e(f"v_perm_b32 v{P+4*sg+i}, v{T_+2*sg}, v{T_+2*sg}, v{c.SEL+i}")
        perm(0); perm(1)
        for tau in range(1, 5):
            e(f"s_cmp_eq_u32 s77, {tau}")
            e(f"s_cbranch_scc1 L_pv{tau}")
        for tau in range(5):
            slot_of = lambda quad: (quad + tau) // 5
            e(f"L_pv{tau}:")
            pairs = sorted({(q // 4, slot_of(q)) for q in range(16)}, key=lambda k: (k[1], k[0]))
            O = {k: OB + 4*i for i, k in enumerate(pairs)}
            MASK = {(0, 1): 64, (1, 1): 66, (1, 2): 68, (2, 2): 70, (2, 3): 72, (3, 3): 74}
            def pv(sg):
                for k in pairs:
                    if k[1] == sg:
                        e(f"v_mfma_f32_16x16x32_bf16 v[{O[k]}:{O[k]+3}], v[{V+4*k[0]}:{V+4*k[0]+3}], v[{P+4*sg}:{P+4*sg+3}], 0")
            pv(0); perm(2); pv(1); perm(3); pv(2); pv(3)
            for T in range(4):
                ks_ = [k for k in pairs if k[0] == T]
                assert len(ks_) <= 2
                for k in ks_:
                    d = OF + 2*T if len(ks_) == 1 else O[k]
                    e(f"v_cvt_pk_bf16_f32 v{d}, v{O[k]}, v{O[k]+1}")
                    e(f"v_cvt_pk_bf16_f32 v{d+1}, v{O[k]+2}, v{O[k]+3}")
                if len(ks_) == 2:
                    mk = MASK[ks_[1]]
                    for z in range(2):
                        e(f"v_cndmask_b32 v{OF+2*T+z}, v{O[ks_[0]]+z}, v{O[ks_[1]]+z}, s[{mk}:{mk+1}]")
            if tau < 4: e("s_branch L_att_done")
        e("L_att_done:")
        self.xstore("ox", [f"buffer_store_dwordx4 v[{OF}:{OF+3}], v{c.L16}, s[44:47], s15 offen",
                           f"buffer_store_dwordx4 v[{OF+4}:{OF+7}], v{c.L16}, s[44:47], s15 offen offset:1024"])
        self.st(5)
        e("s_cmp_lt_u32 s26, 4")
        e("s_cbranch_scc0 L_proj")
        e("s_waitcnt vmcnt(0)")
        e("s_mov_b64 exec, 1")
        self.xstore("fly", ["buffer_store_dword v22, v23, s[44:47], s11 offen"])
        e(fin)
        e("L_proj:")
        TL = self.opt.get("TL", 3)
        seq = [(0, k) for k in range(8)] + [(1, k) for k in range(8)]
        for k in range(8, 20 - TL): seq += [(0, k), (1, k)]
        seq += [(0, k) for k in range(20 - TL, 20)] + [(1, k) for k in range(20 - TL, 20)]
        reg = lambda n: OF + 4*(n % 16)
        def old(n):
            t, k = seq[n]
            i = k // 2
            if self.opt.get("g2abl", 0) & 2 and n >= 18: return
            if self.opt.get("g2abl", 0) & 8: return
            e(f"buffer_load_dwordx4 v[{reg(n)}:{reg(n)+3}], v{31 if t else c.L16}, s[44:47], s{15 if i == 0 else 31+i} offen offset:{1024*(k & 1)} sc1")
        def flagwait(tag, cond):
            e(f"""
            s_mov_b32 s63, 0
            L_fl_poll{tag}:
            s_waitcnt vmcnt({cond[1]})
            v_cmp_ne_u32 vcc, 0, v22
            s_and_b32 s58, vcc_lo, {cond[0]}
            s_cmp_eq_u32 s58, {cond[0]}
            s_cbranch_scc0 L_fl_retry{tag}
            L_fl_ok{tag}:
            """)
            self.cold.append((f"L_fl_retry{tag}", ["s_add_u32 s63, s63, 1", f"s_cmp_ge_u32 s63, {SPIN}", f"s_cbranch_scc1 L_fl_ok{tag}",
                              f"buffer_load_dword v22, v{c.FLA}, s[44:47], s10 offen sc1", "s_waitcnt vmcnt(0)"], f"L_fl_poll{tag}"))
        nv = 0; vpos = {}
        nl = 0; lpos = {}; ldone = -1; vdone = -1
        pend = []
        def mmstep(n, extra):
            t, k = seq[n]
            acc = B2 if t else A2
            for T in range(4):
                b = WB + 16*(k & 7) + 4*T
                e(f"v_mfma_f32_16x16x32_bf16 v[{acc+4*T}:{acc+4*T+3}], v[{b}:{b+3}], v[{reg(n)}:{reg(n)+3}], v[{acc+4*T}:{acc+4*T+3}]")
                extra()
        PA = self.opt.get("PA", 1); PB = self.opt.get("PB", 5)
        e(f"buffer_load_dword v21, v{c.FLA}, s[44:47], s10 offen sc1")
        e("v_mov_b32 v31, v105")
        EI = self.opt.get("earlyinit")
        if not EI: xreads()
        pre(0, PA)
        e("s_waitcnt vmcnt(1)")
        e("s_mov_b64 exec, 1")
        self.xstore("fl", ["buffer_store_dword v22, v23, s[44:47], s11 offen"])
        e("s_mov_b64 exec, -1")
        if self.opt.get("aprio") and self.opt.get("adrop"): e("s_setprio 0")
        e("s_waitcnt vmcnt(1)")
        e("v_cmp_ne_u32 vcc, 0, v21")
        e("s_and_b32 s58, vcc_lo, s43")
        e("s_cmp_eq_u32 s58, s43")
        e("s_cbranch_scc0 L_fl_late")
        for n in range(2, 8): old(n)
        rl = lambda a, b: [x for ks in range(a, b) for x in wrd(ks)]
        if EI: pre(PA, 8)
        else:
            e(f"s_waitcnt lgkmcnt({min(15, 8*PA)})"); inits(rl(PA, 8))
        e("L_fl_join:")
        main_l = self.l; self.l = []
        fl = [f"buffer_load_dword v22, v{c.FLA}, s[44:47], s10 offen sc1"]
        if EI:
            for x in rl(PA, PB) + fl + rl(PB, 8): e(x)
        else:
            e(f"s_waitcnt lgkmcnt({min(15, 8*PA)})"); inits(rl(PA, PB) + fl + rl(PB, 8))
        flagwait("a", ("s43", 0))
        for n in range(2, 8): old(n)
        late = self.l; self.l = main_l
        self.cold.insert(1, ("L_fl_late", late, "L_fl_join"))
        self.st(6)
        e(f"buffer_load_dword v22, v{c.FLA}, s[44:47], s10 offen sc1")
        e("ds_read_b128 v[24:27], v30 offset:16")
        NA = self.opt.get("NA", 2)
        e("s_waitcnt lgkmcnt(15)")
        mmstep(0, lambda: None); mmstep(1, lambda: None)
        for n in range(2, 2 + NA):
            e(f"s_waitcnt vmcnt({8 - n})")
            mmstep(n, lambda: None)
        flagwait("b", ("s42", 0))
        if self.opt.get("stb"): self.st(8)
        nxt = 8
        def vload():
            nonlocal nxt, nv
            old(nxt); vpos[nxt] = nv; nv += 1; nxt += 1
        for _ in range(self.opt.get("NB", 4)): vload()
        e("s_waitcnt lgkmcnt(0)")
        for n in range(2 + NA, 8):
            mmstep(n, lambda: vload() if nxt < n + 16 else None)
        e(f"""
        s_mov_b32 s63, 0
        L_rdy:
        v_readfirstlane_b32 s61, v27
        v_readfirstlane_b32 s57, v25
        v_readfirstlane_b32 s62, v26
        s_cmp_eq_u32 s61, 0
        s_cbranch_scc1 L_rdy_retry
        L_rdy_ok:
        """)
        self.cold.append(("L_rdy_retry", ["s_add_u32 s63, s63, 1", f"s_cmp_ge_u32 s63, {SPIN*20}", "s_cbranch_scc1 L_rdy_ok",
                          "ds_read_b128 v[24:27], v30 offset:16", "s_waitcnt lgkmcnt(0)"], "L_rdy"))
        epi = []
        def slot():
            nonlocal nl
            while pend and not pend[0][0].startswith("ds_"):
                e(pend.pop(0)[0])
            if pend:
                t_, k_ = pend.pop(0); lpos[k_] = nl; nl += 1
                if not self.opt.get("g2abl", 0) & 1: e(t_)
            elif epi:
                for _ in range(2):
                    if epi:
                        x = epi.pop(0); e(x)
                        if x.startswith("ds_"): nl += 1
        def outp(acc, so):
            r = []
            for T in range(4):
                r += [f"v_cvt_pk_bf16_f32 v{acc+4*T}, v{acc+4*T}, v{acc+4*T+1}", f"v_cvt_pk_bf16_f32 v{acc+4*T+1}, v{acc+4*T+2}, v{acc+4*T+3}",
                      f"ds_write_b64 v{c.XA+T}, v[{acc+4*T}:{acc+4*T+1}] offset:{OSCR+so}"]
            return r
        def yhook(t, acc):
            e(f"s_add_u32 s60, s28, {4*t}")
            e("s_lshr_b32 s58, s57, 4")
            e("s_lshr_b32 s59, s62, 4")
            e("s_cmp_eq_u32 s58, s60")
            e("s_cselect_b32 s59, s60, s59")
            e("s_cmp_eq_u32 s59, s60")
            e(f"s_cbranch_scc1 L_y{t}")
            e(f"L_noy{t}:")
            yb = ["s_mov_b32 s63, 0", f"L_yw{t}:", "ds_read_b32 v21, v30 offset:32", "s_add_u32 s63, s63, 1", "s_waitcnt lgkmcnt(0)",
                  "v_readfirstlane_b32 s61, v21", f"s_cmp_ge_u32 s63, {SPIN*40}", f"s_cbranch_scc1 L_ywd{t}", "s_cmp_eq_u32 s61, 0", f"s_cbranch_scc1 L_yw{t}", f"L_ywd{t}:",
                  f"v_lshlrev_b32 v21, 4, v{c.Gp}", f"v_add_u32 v21, {YBUF}, v21"]
            YT = WB + 16*4
            for tok, sr in ((0, 57), (1, 62)):
                yb += [f"s_lshr_b32 s61, s{sr}, 4", "s_cmp_eq_u32 s61, s60", f"s_cbranch_scc0 L_ny{t}{tok}", f"s_and_b32 s61, s{sr}, 15"]
                yb += [f"ds_read_b128 v[{YT+4*T}:{YT+3+4*T}], v21 offset:{tok*256 + T*64}" for T in range(4)]
                yb += [f"v_cmp_eq_u32 vcc, s61, v{c.C}", "s_and_saveexec_b64 s[80:81], vcc", "s_waitcnt lgkmcnt(0)"]
                yb += [f"v_pk_add_f32 v[{acc+2*i}:{acc+2*i+1}], v[{acc+2*i}:{acc+2*i+1}], v[{YT+2*i}:{YT+1+2*i}]" for i in range(8)]
                yb += ["s_mov_b64 exec, s[80:81]", f"L_ny{t}{tok}:"]
            self.cold.append((f"L_y{t}", yb + ["s_nop 1"], f"L_noy{t}"))
        for n in range(8, 40):
            t, k = seq[n]
            w = ""
            if n in vpos and vpos[n] > vdone:
                w += f" vmcnt({nv - 1 - vpos[n]})"; vdone = vpos[n]
            if k >= 8 and lpos[k] > ldone:
                assert not any(p[1] == k for p in pend)
                w += f" lgkmcnt({min(15, nl - 1 - lpos[k])})"; ldone = lpos[k]
            if w: e("s_waitcnt" + w)
            mmstep(n, slot)
            if t == 1 and k + 8 < 20: pend += [(x, k + 8) for x in wrd(k + 8)]
            for _ in range(2):
                if nxt < 40 and n + 16 >= nxt: vload()
            if n == 40 - TL:
                yhook(0, A2)
                epi += outp(A2, 0)
        assert not pend
        self.st(7)
        while epi: e(epi.pop(0))
        oa = self.opt.get("outaux", "").replace("_", " ")
        e(f"""
        s_waitcnt lgkmcnt(0)
        ds_read_b128 v[48:51], v{c.ORD} offset:{OSCR}
        ds_read_b128 v[52:55], v{c.ORD+1} offset:{OSCR+1024}
        """)
        yhook(1, B2)
        ob = outp(B2, 8192)
        for x in ob[:6]: e(x)
        e(f"""
        s_waitcnt lgkmcnt(2)
        buffer_store_dwordx4 v[48:51], v{c.OGL}, s[48:51], s14 offen {oa}
        buffer_store_dwordx4 v[52:55], v{c.OGL+1}, s[48:51], s14 offen {oa}
        """)
        for x in ob[6:]: e(x)
        e(f"""
        v_lshrrev_b32 v20, 3, v0
        v_and_b32 v21, 7, v0
        s_waitcnt lgkmcnt(0)
        ds_read_b128 v[56:59], v{c.ORD} offset:{OSCR+8192}
        ds_read_b128 v[60:63], v{c.ORD+1} offset:{OSCR+8192+1024}
        v_lshl_add_u32 v20, s28, 4, v20
        v_mul_u32_u24 v20, 1280, v20
        v_lshl_add_u32 v20, v21, 4, v20
        v_add_u32 v21, {8*1280}, v20
        s_waitcnt lgkmcnt(1)
        buffer_store_dwordx4 v[56:59], v20, s[48:51], s41 offen {oa}
        s_waitcnt lgkmcnt(0)
        buffer_store_dwordx4 v[60:63], v21, s[48:51], s41 offen {oa}
        """)
        if not self.opt.get("preb11") and not self.opt.get("stb"): self.st(8)
        if self.stamp or self.diag_hold: e("s_waitcnt vmcnt(0)")
        e(fin)

    def wave7_tail(self):
        e = self.e; c = self
        WB11 = 32
        e("L_w3:")
        self.srd(52, 22, 256)
        self.keys_addr(5, 6)
        e("buffer_load_dword v4, v5, s[52:55], 0 offen sc1")
        e("s_waitcnt lgkmcnt(0)")
        e("s_barrier")
        self.st(2)
        self.srd(40, 12, 640 * 1280)
        e(f"""
        v_lshrrev_b32 v24, 3, v0
        v_and_b32 v25, 7, v0
        v_lshlrev_b32 v27, 1, v{c.Gp}
        v_xor_b32 v27, v27, v25
        v_mul_u32_u24 v23, 1280, v24
        v_lshl_add_u32 v32, v27, 4, v23
        s_lshl_b32 s58, s76, 7
        v_add_u32 v32, s58, v32
        s_add_u32 s58, s30, 3
        s_cmp_ge_u32 s58, 10
        s_cselect_b32 s59, 10, 0
        s_sub_u32 s58, s58, s59
        s_mul_i32 s67, s58, {64*1280}
        """)
        for i in range(1, 8):
            e(f"v_add_u32 v{32+i}, {i*8*1280}, v32")
        for b in range(4, 10):
            e(f"s_add_u32 s{64+b}, s{63+b}, {64*1280}")
            e(f"s_cmp_eq_u32 s{64+b}, {640*1280}")
            e(f"s_cselect_b32 s{64+b}, 0, s{64+b}")
        self.poll_keys("w7", 4, 5, 6, 56, 57, 58)
        e(f"""
        s_mul_i32 s58, s29, 97
        s_cmp_eq_u32 s29, 0
        s_cselect_b32 s59, 1, 15
        s_mov_b32 s62, 0
        """)
        for k in (56, 57):
            e(f"""
            s_and_b32 s{k}, s{k}, 0x7ff
            s_sub_u32 s{k}, 2048, s{k}
            s_sub_i32 s{k}, s{k}, s58
            s_cmp_ge_i32 s{k}, s59
            s_cselect_b32 s{k}, s{k}, 0xffff
            s_cmp_lt_i32 s{k}, 112
            s_cselect_b32 s{k}, s{k}, 0xffff
            s_cselect_b32 s62, 1, s62
            """)
        e(f"""
        v_mov_b32 v8, s62
        v_mov_b32 v9, s56
        v_mov_b32 v10, s57
        v_mov_b32 v11, 1
        v_mov_b32 v2, {INFO}
        """)
        if WB11 < 76:
            e(f"s_mov_b32 m0, {WO + 1024*WB11}")
            self.wo_loads(WB11, 76, 1, self.opt.get("WTH", 16))
        e("s_mov_b32 m0, 0")
        self.wo_loads(76, 80, 1)
        e(f"""
        s_waitcnt vmcnt(0)
        ds_write_b128 v2, v[8:11] offset:16
        s_waitcnt lgkmcnt(0)
        """)
        self.st(3)
        e(f"""
        s_cmp_eq_u32 s62, 0
        s_cbranch_scc1 L_fin
        v_mov_b32 v5, {DBG_FFN}
        v_and_b32 v20, 15, v0
        v_lshrrev_b32 v21, 4, v0
        s_mov_b32 s63, 0
        L_yp:
        buffer_load_dword v4, v5, s[52:55], 0 offen sc1
        s_add_u32 s63, s63, 1
        s_waitcnt vmcnt(0)
        v_readfirstlane_b32 s58, v4
        s_cmp_ge_u32 s63, {SPIN}
        s_cbranch_scc1 L_ypd
        s_cmp_ge_u32 s58, 27
        s_cbranch_scc0 L_yp
        L_ypd:
        v_mul_u32_u24 v5, 5120, v21
        v_lshl_add_u32 v5, v20, 4, v5
        s_lshl_b32 s58, s76, 8
        s_add_u32 s58, s58, {YP_OFF}
        """)
        self.st(4)
        for n in range(7):
            for tok in range(2):
                b = 32 + 28*tok + 4*n
                e(f"buffer_load_dwordx4 v[{b}:{b+3}], v5, s[44:47], s58 offen offset:{tok*2560} sc1")
            e(f"s_add_u32 s58, s58, {4*5120}")
        e(f"v_lshlrev_b32 v6, 4, v20")
        e(f"v_lshl_add_u32 v6, v21, 2, v6")
        e(f"v_add_u32 v6, {YBUF}, v6")
        e("s_waitcnt vmcnt(0)")
        for tok in range(2):
            b = 32 + 28*tok
            for n in range(1, 7):
                for i in range(2):
                    e(f"v_pk_add_f32 v[{b+2*i}:{b+2*i+1}], v[{b+2*i}:{b+2*i+1}], v[{b+4*n+2*i}:{b+4*n+2*i+1}]")
            e(f"v_permlane32_swap_b32 v{b}, v{b+2}")
            e(f"v_permlane32_swap_b32 v{b+1}, v{b+3}")
            e(f"v_add_f32 v{b}, v{b}, v{b+2}")
            e(f"v_add_f32 v{b+1}, v{b+1}, v{b+3}")
            e(f"v_permlane16_swap_b32 v{b}, v{b+1}")
            e(f"v_add_f32 v{b}, v{b}, v{b+1}")
            e(f"ds_write_b32 v6, v{b} offset:{tok*256}")
        e("s_waitcnt lgkmcnt(0)")
        e("ds_write_b32 v2, v11 offset:32")
        e("s_waitcnt lgkmcnt(0)")
        e("s_branch L_fin")

    def server(self):
        e = self.e
        e(f"""
        L_other:
        s_cmp_ge_u32 s2, 256
        s_cbranch_scc1 L_end
        s_load_dwordx4 s[20:23], s[0:1], 64
        s_load_dwordx2 s[24:25], s[0:1], 80
        s_cmp_eq_u32 s26, 0
        s_cbranch_scc0 L_other2
        """)
        self.pf_back["L_other"] = True
        self.code_prefetch("L_other", None, 44, 255)
        e(f"""
        L_other2:
        s_cmp_eq_u32 s27, 7
        s_cbranch_scc1 L_fx
        L_spare:
        s_add_u32 s56, s27, 20
        s_cmp_eq_u32 s28, 31
        s_cselect_b32 s28, s56, s28
        s_cbranch_scc1 L_ffn
        s_cmp_ge_u32 s26, 6
        s_cbranch_scc1 L_end
        s_lshr_b32 s56, s26, 1
        s_and_b32 s62, s26, 1
        s_mul_i32 s29, s27, 3
        s_add_u32 s29, s29, s56
        s_lshl_b32 s58, s29, 1
        s_add_u32 s58, s58, s62
        s_lshl_b32 s58, s58, 7
        s_add_u32 s58, s58, {EP_OFF}
        s_lshl_b32 s60, s62, 10
        s_mul_i32 s59, s29, 20480
        s_add_u32 s59, s59, s60
        s_add_u32 s59, s59, {ST_OFF}
        s_lshl_b32 s61, s29, 11
        s_add_u32 s60, s60, s61
        s_add_u32 s60, s60, {SF_OFF}
        v_lshlrev_b32 v2, 2, v0
        v_mov_b32 v3, 0
        v_lshlrev_b32 v4, 4, v0
        s_waitcnt lgkmcnt(0)
        """)
        self.srd(44, 24, WS_BYTES)
        self.srd(36, 12, 1280)
        self.srd(52, 22, 256)
        e("buffer_load_dword v5, v3, s[44:47], s58 offen sc1")
        for q in range(5):
            e(f"buffer_load_dword v{6+q}, v2, s[36:39], 0 offen offset:{256*q}")
        for i in range(1, 5):
            e(f"v_add_u32 v{20+i}, {i*4096}, v4")
        e("""
        v_mov_b32 v20, v4
        s_mov_b32 s57, 0x3f803f80
        v_mov_b32 v11, 0
        s_waitcnt vmcnt(0)
        v_readfirstlane_b32 s56, v5
        s_add_u32 s61, s56, 8
        s_and_b32 s56, s61, -8
        """)
        for q in range(5):
            e(f"v_dot2c_f32_bf16 v11, s57, v{6+q}")
        self.row_red("v_add_f32", 11)
        e("""
        v_mov_b32 v12, v11
        v_permlane16_swap_b32 v11, v12
        v_add_f32 v11, v11, v12
        v_mov_b32 v12, v11
        v_permlane32_swap_b32 v11, v12
        v_add_f32 v11, v11, v12
        s_mov_b32 s63, 0
        L_sv:
        s_and_b32 s64, s63, 15
        s_cmp_eq_u32 s64, 15
        """)
        e(f"s_cselect_b32 s64, {ST2_OFF - ST_OFF}, 0")
        e("s_add_u32 s64, s64, s59")
        for jj in range(10):
            e(f"buffer_load_dwordx4 v[{32+4*jj}:{35+4*jj}], v{20+jj//2}, s[44:47], s64 offen offset:{(jj%2)*2048} sc1")
        e("s_add_u32 s63, s63, 1")
        e("s_waitcnt vmcnt(0)")
        for op, d in (("min", 12), ("max", 13)):
            e(f"v_{op}3_u32 v{d}, v35, v39, v43")
            for jj in (3, 5, 7):
                e(f"v_{op}3_u32 v{d}, v{d}, v{35+4*jj}, v{39+4*jj}")
            e(f"v_{op}_u32 v{d}, v{d}, v71")
        e(f"""
        v_xor_b32 v14, s56, v12
        v_xor_b32 v15, s56, v13
        v_or_b32 v14, v14, v15
        v_cmp_lt_u32 vcc, 7, v14
        s_cmp_ge_u32 s63, {SPIN}
        s_cbranch_scc1 L_sv_ok
        s_cmp_eq_u64 vcc, 0
        s_cbranch_scc0 L_sv
        L_sv_ok:
        """)
        self.st(1, False)
        for jj in range(1, 10):
            e(f"v_pk_add_f32 v[32:33], v[32:33], v[{32+4*jj}:{33+4*jj}]")
            e(f"v_add_f32 v34, v34, v{34+4*jj}")
        self.ln_scalars(32, 33, 16, 17, 18)
        e(f"""
        v_rcp_f32 v37, v17
        v_sub_f32 v36, 0, v16
        v_cmp_eq_u32 vcc, v12, v13
        v_mov_b32 v39, s56
        v_cndmask_b32 v38, 2, {2 if self.force_remote else 1}, vcc
        buffer_store_dwordx4 v[36:39], v4, s[44:47], s60 offen sc1
        v_mov_b32 v5, s61
        s_mov_b64 exec, 1
        buffer_store_dword v5, v3, s[44:47], s58 offen sc1
        s_mov_b64 exec, -1
        v_fma_f32 v34, v36, v11, v34
        v_mul_f32 v34, v34, v37
        v_ashrrev_i32 v12, 31, v34
        v_or_b32 v12, 0x80000000, v12
        v_xor_b32 v34, v34, v12
        v_and_b32 v34, 0xfffff800, v34
        s_lshl_b32 s59, s62, 6
        v_add_u32 v12, s59, v0
        s_mul_i32 s59, s29, 97
        s_sub_u32 s59, 2048, s59
        v_sub_u32 v13, s59, v12
        v_or_b32 v34, v34, v13
        v_max_u32 v34, 1, v34
        s_cmp_eq_u32 s29, 0
        s_cselect_b32 s60, 1, 15
        s_add_u32 s59, s59, 1
        s_min_u32 s59, s59, 112
        v_cmp_le_u32 vcc, s60, v12
        v_cndmask_b32 v34, 0, v34, vcc
        v_cmp_gt_u32 vcc, s59, v12
        v_cndmask_b32 v34, 0, v34, vcc
        """)
        self.top2(34, 6, 56, 57, 58)
        e("""
        v_mov_b32 v6, s56
        v_mov_b32 v7, s57
        s_lshl_b32 s58, s26, 3
        v_mov_b32 v8, s58
        ds_write_b64 v8, v[6:7]
        s_waitcnt lgkmcnt(0)
        s_barrier
        s_cmp_eq_u32 s26, 0
        s_cbranch_scc0 L_fin
        ds_read_b32 v4, v2
        v_cmp_gt_u32 vcc, 12, v0
        s_waitcnt lgkmcnt(0)
        v_cndmask_b32 v4, 0, v4, vcc
        """)
        self.top2(4, 6, 56, 57, 58, rows=1)
        e("""
        v_mov_b32 v4, s56
        v_mov_b32 v5, s57
        s_lshl_b32 s58, s27, 3
        v_mov_b32 v6, s58
        s_mov_b64 exec, 1
        buffer_store_dwordx2 v[4:5], v6, s[52:55], 0 offen sc1
        s_branch L_fin
        """)

    def ffn(self):
        e = self.e
        XN = 81920; H = XN + 4096; SIG = XN + 4608
        e(f"""
        L_fx:
        s_cmp_ge_u32 s28, 20
        s_cbranch_scc0 L_ffn
        {"s_endpgm" if self.opt.get("nopf") else ""}
        {("s_sleep %d" % self.opt["pfdelay"]) if self.opt.get("pfdelay") else ""}
        s_sub_u32 s56, s28, 20
        s_lshl_b32 s56, s56, 3
        s_add_u32 s56, s56, s26
        s_mul_i32 s56, s56, {180*128}
        v_lshlrev_b32 v2, 7, v0
        v_add_u32 v3, {64*128}, v2
        v_add_u32 v4, {128*128}, v2
        s_waitcnt lgkmcnt(0)
        """)
        self.srd(40, 18, 1728 * 1280)
        e("""
        buffer_load_dword v5, v2, s[40:43], s56 offen
        buffer_load_dword v6, v3, s[40:43], s56 offen
        s_bfm_b64 exec, 52, 0
        buffer_load_dword v7, v4, s[40:43], s56 offen
        s_waitcnt vmcnt(0)
        s_endpgm
        """)
        e(f"""
        L_ffn:
        {"s_endpgm" if self.opt.get("noffn") else ""}
        {("s_sleep %d" % self.opt["ffndelay"]) if self.opt.get("ffndelay") else ""}
        v_lshrrev_b32 v2, 3, v0
        v_and_b32 v3, 7, v0
        v_bfe_u32 v4, v0, 4, 1
        s_and_b32 s56, s26, 1
        s_lshl_b32 s56, s56, 1
        v_or_b32 v4, s56, v4
        v_xor_b32 v4, v4, v3
        v_lshlrev_b32 v4, 4, v4
        v_mul_u32_u24 v11, 3456, v2
        v_add_u32 v10, v11, v4
        v_xor_b32 v4, 64, v4
        v_add_u32 v11, v11, v4
        s_mul_i32 s57, s26, {8*3456}
        s_lshl_b32 s58, s28, 7
        s_add_u32 s57, s57, s58
        s_lshl_b32 s56, s26, 10
        s_mov_b32 s63, 0
        s_waitcnt lgkmcnt(0)
        """)
        self.srd(32, 14, 640 * 3456)
        self.srd(36, 16, 640 * 3456)
        e(f"""
        L_f_ld:
        s_mov_b32 m0, s56
        s_add_u32 s63, s63, 1
        buffer_load_dwordx4 v10, s[32:35], s57 offen nt lds
        s_add_u32 m0, s56, 40960
        s_add_u32 s56, s56, 8192
        buffer_load_dwordx4 v11, s[36:39], s57 offen nt lds
        s_add_u32 s57, s57, {64*3456}
        s_cmp_eq_u32 s63, 5
        s_cselect_b32 s58, 40960, 0
        s_add_u32 s56, s56, s58
        s_cmp_lt_u32 s63, 10
        s_cbranch_scc1 L_f_ld
        """)
        self.srd(40, 18, 1728 * 1280)
        self.srd(44, 24, WS_BYTES)
        self.srd(48, 4, 2048 * 1280)
        self.srd(52, 22, 256)
        e(f"""
        v_lshrrev_b32 v21, 4, v0
        v_and_b32 v20, 15, v0
        v_bfe_u32 v2, v0, 2, 2
        v_lshl_add_u32 v3, v21, 3, v2
        v_bfe_u32 v5, v0, 1, 1
        v_lshrrev_b32 v6, 1, v2
        v_and_b32 v7, 1, v21
        v_lshl_or_b32 v6, v7, 1, v6
        v_lshl_or_b32 v6, v5, 2, v6
        v_xor_b32 v6, s26, v6
        v_lshlrev_b32 v6, 4, v6
        v_lshl_add_u32 v6, v3, 7, v6
        v_and_b32 v8, 1, v0
        v_lshl_add_u32 v6, v8, 3, v6
        v_mul_u32_u24 v8, 40960, v5
        v_add_u32 v12, v6, v8
        v_add_u32 v13, 81920, v12
        v_lshl_or_b32 v6, v7, 2, v2
        v_xor_b32 v6, s26, v6
        v_lshlrev_b32 v6, 5, v6
        v_lshl_add_u32 v6, v3, 8, v6
        v_and_b32 v8, 3, v0
        v_lshl_add_u32 v14, v8, 3, v6
        v_add_u32 v15, 65536, v14
        s_and_b32 s58, s26, 2
        s_lshl_b32 s58, s58, 1
        v_or_b32 v6, s58, v21
        v_lshlrev_b32 v6, 1, v6
        v_xor_b32 v6, v6, v20
        v_lshlrev_b32 v6, 4, v6
        v_mul_u32_u24 v16, 1280, v21
        v_add_u32 v16, v16, v6
        s_sub_u32 s56, s26, 4
        s_mul_i32 s57, s28, 64
        s_lshl_b32 s58, s56, 2
        s_add_u32 s57, s57, s58
        s_mul_i32 s57, s57, 1280
        s_lshl_b32 s56, s56, 10
        """)
        self.keys_addr(23, 6)
        e("s_waitcnt vmcnt(10)")
        e("s_barrier")
        WG = 40
        def frd(reg):
            for k in range(10):
                for u in range(2):
                    b = WG + 40*reg + 4*k + 2*u
                    e(f"ds_read_b64_tr_b16 v[{b}:{b+1}], v{12+reg} offset:{k*4096 + u*512}")
                if k == 5: e("s_waitcnt lgkmcnt(4)")
            e("s_waitcnt lgkmcnt(0)")
        def wdl(tag):
            e(f"s_mov_b32 s63, 0")
            e(f"L_f_wd{tag}:")
            for seg in range(5):
                e(f"s_add_u32 m0, s56, {seg*16384 - seg*256}")
                off = f" offset:{seg*256}" if seg else ""
                e(f"buffer_load_dwordx4 v16, s[40:43], s57 offen{off} lds")
            e(f"""
            s_add_u32 s57, s57, {16*1280}
            s_add_u32 s56, s56, 4096
            s_add_u32 s63, s63, 1
            s_cmp_lt_u32 s63, 2
            s_cbranch_scc1 L_f_wd{tag}
            """)
        frd(0)
        e("s_barrier")
        self.st(1, False)
        e("s_cmp_ge_u32 s26, 4")
        e("s_cbranch_scc0 L_f_nod")
        wdl("a")
        e("""
        s_waitcnt vmcnt(10)
        s_branch L_f_d
        L_f_nod:
        s_waitcnt vmcnt(0)
        buffer_load_dword v4, v23, s[52:55], 0 offen sc1
        L_f_d:
        s_barrier
        """)
        frd(1)
        e("s_barrier")
        self.st(2, False)
        e("s_cmp_ge_u32 s26, 4")
        e("s_cbranch_scc0 L_f_nod2")
        wdl("b")
        e("s_branch L_f_x")
        e("L_f_nod2:")
        e("s_cmp_ge_u32 s26, 2")
        e("s_cbranch_scc1 L_f_x")
        e("s_setprio 3")
        self.poll_keys("f", 4, 23, 6, 56, 57, 58)
        self.st(3, False)
        e(f"""
        s_cmp_eq_u32 s26, 0
        s_cselect_b32 s56, s56, s57
        s_and_b32 s57, s56, 0x7ff
        s_sub_u32 s57, 2047, s57
        s_mul_i32 s57, s57, 1280
        v_lshlrev_b32 v5, 2, v0
        """)
        for q in range(5):
            e(f"buffer_load_dword v{24+q}, v5, s[48:51], s57 offen offset:{256*q}")
        e(f"""
        s_and_b32 s56, s56, 0xfffff800
        s_or_b32 s56, s56, 0x400
        s_ashr_i32 s58, s56, 31
        s_not_b32 s58, s58
        s_or_b32 s58, s58, 0x80000000
        s_xor_b32 s56, s56, s58
        v_mov_b32 v6, s56
        """)
        self.rbf(6, 6)
        e(f"""
        v_mul_f32 v6, 0xbfb8aa3b, v6
        v_exp_f32 v6, v6
        v_add_f32 v6, 1.0, v6
        v_rcp_f32 v6, v6
        """)
        self.rbf(6, 6)
        e(f"""
        s_lshl_b32 s58, s26, 2
        s_add_u32 s58, s58, {SIG}
        v_mov_b32 v7, s58
        ds_write_b32 v7, v6
        s_mov_b32 s59, 0x3f803f80
        v_mov_b32 v9, 0
        v_mov_b32 v10, 0
        s_waitcnt vmcnt(0)
        """)
        for q in range(5):
            e(f"v_dot2c_f32_bf16 v9, s59, v{24+q}")
            e(f"v_dot2c_f32_bf16 v10, v{24+q}, v{24+q}")
        for k in (8, 4, 2, 1):
            for v in (9, 10):
                e(f"v_add_f32_dpp v{v}, v{v}, v{v} row_ror:{k} row_mask:0xf bank_mask:0xf")
        e("""
        v_permlane32_swap_b32 v9, v10
        v_add_f32 v9, v9, v10
        v_mov_b32 v10, v9
        v_permlane16_swap_b32 v9, v10
        v_add_f32 v9, v9, v10
        v_mov_b32 v10, v9
        v_permlane32_swap_b32 v9, v10
        """)
        self.ln_scalars(9, 10, 17, 18, 19)
        e("v_rcp_f32 v18, v18")
        e("s_mul_i32 s58, s26, 1280")
        e(f"s_add_u32 s58, s58, {XN}")
        e("v_add_u32 v5, s58, v5")
        for q in range(5):
            e(f"""
            v_lshlrev_b32 v30, 16, v{24+q}
            v_and_b32 v31, 0xffff0000, v{24+q}
            v_sub_f32 v30, v30, v17
            v_sub_f32 v31, v31, v17
            v_cvt_pk_bf16_f32 v31, v30, v31
            v_lshlrev_b32 v30, 16, v31
            v_and_b32 v31, 0xffff0000, v31
            v_mul_f32 v30, v30, v18
            v_mul_f32 v31, v31, v18
            v_cvt_pk_bf16_f32 v{32+q}, v30, v31
            ds_write_b32 v5, v{32+q} offset:{256*q}
            """)
        e(f"""
        L_f_x:
        v_and_b32 v2, 1, v0
        v_mul_u32_u24 v3, 1280, v2
        v_lshl_add_u32 v3, v21, 4, v3
        v_add_u32 v3, {XN}, v3
        v_lshlrev_b32 v8, 7, v2
        v_lshl_add_u32 v8, v21, 4, v8
        v_add_u32 v8, {H}, v8
        v_lshlrev_b32 v5, 2, v2
        v_add_u32 v5, {SIG}, v5
        s_waitcnt lgkmcnt(0)
        s_barrier
        """)
        self.st(4, False)
        XB = 120
        def gu(kk):
            d = 24 + 4*(kk & 1)
            e(f"v_mfma_f32_16x16x32_bf16 v[{d}:{d+3}], v[{WG+4*kk}:{WG+4*kk+3}], v[{XB+4*kk}:{XB+4*kk+3}], {'0' if kk < 2 else f'v[{d}:{d+3}]'}")
        for k in range(20):
            e(f"ds_read_b128 v[{XB+4*k}:{XB+4*k+3}], v3 offset:{64*k}")
            if k >= 8:
                e("s_waitcnt lgkmcnt(8)")
                gu(k - 8)
        for kk in range(12, 20):
            e(f"s_waitcnt lgkmcnt({19-kk})")
            gu(kk)
        e("ds_read_b32 v22, v5")
        for i in range(4):
            e(f"v_add_f32 v{24+i}, v{24+i}, v{28+i}")
        for i in range(4):
            self.rbf(24+i, 24+i)
        for i in range(4):
            e(f"v_mov_b32 v{28+i}, v{24+i}")
        for i in range(4):
            e(f"v_permlane32_swap_b32 v{24+i}, v{28+i}")
        for i in range(4):
            e(f"v_mul_f32 v{32+i}, 0xbfb8aa3b, v{24+i}")
        for i in range(4):
            e(f"v_exp_f32 v{32+i}, v{32+i}")
        for i in range(4):
            e(f"v_add_f32 v{32+i}, 1.0, v{32+i}")
        for i in range(4):
            e(f"v_rcp_f32 v{32+i}, v{32+i}")
        for i in range(4):
            e(f"v_mul_f32 v{24+i}, v{24+i}, v{32+i}")
        for i in range(4):
            self.rbf(24+i, 24+i)
        for i in range(4):
            e(f"v_mul_f32 v{24+i}, v{24+i}, v{28+i}")
        e(f"""
        v_cvt_pk_bf16_f32 v24, v24, v25
        v_cvt_pk_bf16_f32 v25, v26, v27
        v_lshlrev_b32 v6, 7, v2
        v_and_b32 v7, 1, v21
        v_lshl_add_u32 v6, v7, 3, v6
        s_lshl_b32 s58, s26, 4
        s_add_u32 s58, s58, {H}
        v_add_u32 v6, s58, v6
        ds_write_b64 v6, v[24:25]
        s_waitcnt vmcnt(0) lgkmcnt(0)
        s_barrier
        """)
        self.st(5, False)
        e("ds_read_b128 v[24:27], v8")
        e("ds_read_b128 v[28:31], v8 offset:64")
        for seg in range(5):
            for k in range(2):
                for u in range(2):
                    b = WG + 8*seg + 4*k + 2*u
                    a, off = (14, seg*16384) if seg < 4 else (15, 0)
                    e(f"ds_read_b64_tr_b16 v[{b}:{b+1}], v{a} offset:{off + k*8192 + u*1024}")
            if seg == 2: e("s_waitcnt lgkmcnt(4)")
        e(f"""
        v_mul_u32_u24 v6, 2560, v20
        v_lshl_add_u32 v6, v21, 4, v6
        v_mov_b32 v7, {OOB}
        v_cmp_gt_u32 vcc, 2, v20
        v_cndmask_b32 v6, v7, v6, vcc
        s_mul_i32 s58, s28, 5120
        s_lshl_b32 s59, s26, 6
        s_add_u32 s58, s58, s59
        s_add_u32 s58, s58, {YP_OFF}
        s_waitcnt lgkmcnt(0)
        """)
        for k in range(2):
            for seg in range(5):
                d = XB + 4*seg; b = WG + 8*seg + 4*k
                e(f"v_mfma_f32_16x16x32_bf16 v[{d}:{d+3}], v[{b}:{b+3}], v[{24+4*k}:{27+4*k}], {'0' if k == 0 else f'v[{d}:{d+3}]'}")
        for seg in range(5):
            d = XB + 4*seg
            for i in range(4):
                e(f"v_mul_f32 v{d+i}, v{d+i}, v22")
            e(f"buffer_store_dwordx4 v[{d}:{d+3}], v6, s[44:47], s58 offen offset:{seg*512} sc1")
        self.st(6, False)
        e(f"""
        s_waitcnt vmcnt(0)
        s_barrier
        s_cmp_eq_u32 s26, 0
        s_cbranch_scc0 L_fin
        v_mov_b32 v4, 1
        v_mov_b32 v5, {DBG_FFN}
        s_mov_b64 exec, 1
        buffer_atomic_add v4, v5, s[52:55], 0 offen sc1
        """)


if __name__ == "__main__":
    out = f"cdna_kernels/{NAME}.s"
    opt = {}
    for a in sys.argv[1:]:
        k, v = a.split("=", 1)
        if k == "o": out = v
        else:
            try: opt[k] = int(v)
            except ValueError: opt[k] = v
    if "spin" in opt: SPIN = opt["spin"]
    import hz
    hz.EXTRA = opt.get("extra", 0); hz.LGCAP = opt.get("lgcap", 0)
    open(out, "w").write(G(**opt).gen())
```
